```python
import torch

def _softmax(x, axis=-1):
    return torch.softmax(x, dim=axis)

def _gelu(x):
    return torch.nn.functional.gelu(x, approximate='tanh')

def _silu(x):
    return torch.nn.functional.silu(x)

def _sigmoid(x):
    return torch.sigmoid(x)

def _layernorm(x, axis=-1, eps=1e-05):
    m = x.mean(dim=axis, keepdim=True)
    v = x.var(dim=axis, keepdim=True, unbiased=False)
    return (x - m) / torch.sqrt(v + eps)

def _scatter_add(tgt, idx, src, axis=0):
    return tgt.clone().index_add_(axis, idx, src)

def _segment_sum(src, seg, n):
    out = torch.zeros((n,) + src.shape[1:], dtype=src.dtype)
    return out.index_add_(0, seg, src)

def _pad(x, pw):
    flat = tuple((v for pair in reversed(pw) for v in pair))
    return torch.nn.functional.pad(x, flat)
kernel_name = 'concat_heads__memory_aug_recurrent_mem_tr__ssm_conv_h3__prompt'

def setup_inputs():

    _w = lambda a: (lambda t: t.to(torch.bfloat16) if t.is_floating_point() else t)(torch.as_tensor(a))

    def _A_setup():
        B, S, Dm = (1, 2048, 512)
        H, Dh = (32, 128)
        M, seg = (8, 32)
        seg = min(seg, S)
        S = S // seg * seg
        return {'x': _w((lambda *s: torch.randn(*s, dtype=torch.bfloat16) * 0.05)(B, S, Dm)), 'mem0': _w((lambda *s: torch.randn(*s, dtype=torch.bfloat16) * 0.4)(B, M, Dm)), 'Wq': _w((lambda *s: torch.randn(*s, dtype=torch.bfloat16) * 6.4)(Dm, H, Dh) * Dm ** (-0.5)), 'Wk': _w((lambda *s: torch.randn(*s, dtype=torch.bfloat16) * 6.4)(Dm, H, Dh) * Dm ** (-0.5)), 'Wv': _w((lambda *s: torch.randn(*s, dtype=torch.bfloat16) * 0.4)(Dm, H, Dh) * Dm ** (-0.5)), 'Wo': _w((lambda *s: torch.randn(*s, dtype=torch.bfloat16) * 0.4)(H, Dh, Dm) * (H * Dh) ** (-0.5)), 'seg_len': seg}
    _A_in = _A_setup()

    def _B_setup():
        B, S, D = (1, 2048, 512)
        ks = 4
        return {'q': _w((lambda *s: torch.randn(*s, dtype=torch.bfloat16) * 0.05)(B, S, D)), 'k': _w((lambda *s: torch.randn(*s, dtype=torch.bfloat16) * 0.4)(B, S, D)), 'v': _w((lambda *s: torch.randn(*s, dtype=torch.bfloat16) * 0.4)(B, S, D)), 'shift_k': _w((lambda *s: torch.randn(*s, dtype=torch.bfloat16) * 0.4)(D, ks) * 0.5), 'ssm_k': _w((lambda *s: torch.randn(*s, dtype=torch.bfloat16) * 0.4)(D, S) * (1.0 / S ** 0.5)), 'ssm_D': _w((lambda *s: torch.randn(*s, dtype=torch.bfloat16) * 0.4)(D))}
    _B_in = _B_setup()
    return {'A_x': _A_in['x'], 'A_mem0': _A_in['mem0'], 'A_Wq': _A_in['Wq'], 'A_Wk': _A_in['Wk'], 'A_Wv': _A_in['Wv'], 'A_Wo': _A_in['Wo'], 'A_seg_len': _A_in['seg_len'], 'B_q': _B_in['q'], 'B_k': _B_in['k'], 'B_v': _B_in['v'], 'B_shift_k': _B_in['shift_k'], 'B_ssm_k': _B_in['ssm_k'], 'B_ssm_D': _B_in['ssm_D']}

def reference(A_x, A_mem0, A_Wq, A_Wk, A_Wv, A_Wo, A_seg_len, B_q, B_k, B_v, B_shift_k, B_ssm_k, B_ssm_D):

    def _A_ref(x, mem0, Wq, Wk, Wv, Wo, seg_len):
        B, S, Dm = x.shape
        H, Dh = (Wq.shape[1], Wq.shape[2])
        M = mem0.shape[1]
        scale = Dh ** (-0.5)
        n_seg = S // seg_len
        L = M + seg_len
        idx = torch.arange(L)
        mask = (idx[:, None] < M) | (idx[:, None] >= idx[None, :])
        mem = mem0
        outs = []
        for s in range(n_seg):
            xs = x[:, s * seg_len:(s + 1) * seg_len, :].clone()
            h = torch.concatenate([mem, xs], axis=1)
            q = torch.einsum('btd,dhe->bhte', h, Wq)
            k = torch.einsum('btd,dhe->bhte', h, Wk)
            v = torch.einsum('btd,dhe->bhte', h, Wv)
            scores = torch.einsum('bhqe,bhke->bhqk', q, k) * scale
            scores = torch.where(mask[None, None], scores, -1000000000.0)
            p = _softmax(scores, axis=-1)
            o = torch.einsum('bhqk,bhke->bhqe', p, v)
            o = torch.einsum('bhte,hed->btd', o, Wo)
            mem = o[:, :M, :].clone()
            outs.append(o[:, M:, :])
        return torch.concatenate(outs, axis=1)

    def _B_ref(q, k, v, shift_k, ssm_k, ssm_D):
        B, S, D = q.shape
        ks = shift_k.shape[-1]
        k_pad = _pad(k, ((0, 0), (ks - 1, 0), (0, 0)))
        k_shift = torch.zeros_like(k)
        for t in range(ks):
            k_shift = k_shift + k_pad[:, t:t + S, :] * shift_k[:, ks - 1 - t][None, None, :]
        kv = k_shift * v
        L = 2 * S
        kv_pad = _pad(kv, ((0, 0), (0, S), (0, 0)))
        kf_pad = _pad(ssm_k, ((0, 0), (0, S)))
        kv_f = (lambda x, axes=(-2, -1): torch.fft.rfft2(x.float(), dim=axes))(kv_pad[:, None, :, :], axes=(1, 2))
        kf_f = (lambda x, axes=(-2, -1): torch.fft.rfft2(x.float(), dim=axes))(kf_pad[:, None, :], axes=(1, 2))
        kf_f = (lambda x, *d: x.permute(*d))(kf_f, 1, 2, 0)
        y_f = kv_f * kf_f[None, :, :, :]
        y = (lambda x, s, axes=(-2, -1): torch.fft.irfft2(x, s=s, dim=axes).to(torch.bfloat16))(y_f, (1, L), axes=(1, 2))[:, 0, :S, :]
        y = y + kv * ssm_D[None, None, :]
        return q * y
    a = _A_ref(A_x, A_mem0, A_Wq, A_Wk, A_Wv, A_Wo, A_seg_len)
    b = _B_ref(B_q, B_k, B_v, B_shift_k, B_ssm_k, B_ssm_D)
    return torch.concatenate([a, b], axis=-1)
```

```python
import re

class Asm:
    def __init__(self):
        self.lines = []
    def __call__(self, s):
        for ln in s.split("\n"):
            ln = ln.strip()
            if ln: self.lines.append(ln)
    def label(self, name): self.lines.append(name + ":")
    def text(self):
        out = []
        for ln in self.lines:
            if ln.endswith(":") or ln.startswith("."): out.append(ln)
            else: out.append("    " + ln)
        return "\n".join(out) + "\n"

def vr(b, n=1, k="v"):
    return f"{k}{b}" if n == 1 else f"{k}[{b}:{b+n-1}]"
def ar(b, n=1): return vr(b, n, "a")
def sr(b, n=1): return vr(b, n, "s")

_reg = re.compile(r"\b([vas])(?:(\d+)|\[(\d+):(\d+)\])")
def regs(op):
    out = set()
    for m in _reg.finditer(op):
        k = m.group(1)
        if m.group(2) is not None: out.add((k, int(m.group(2))))
        else:
            for i in range(int(m.group(3)), int(m.group(4)) + 1): out.add((k, i))
    if re.search(r"\bvcc\b", op): out.add(("s", "vcc"))
    if re.search(r"\bexec\b", op): out.add(("s", "exec"))
    if re.search(r"\bm0\b", op): out.add(("s", "m0"))
    return out

def split_ops(rest):
    ops, depth, cur = [], 0, ""
    for ch in rest:
        if ch == "[": depth += 1
        if ch == "]": depth -= 1
        if ch == "," and depth == 0: ops.append(cur.strip()); cur = ""
        else: cur += ch
    if cur.strip(): ops.append(cur.strip())
    return ops

TRANS = ("v_exp_f32", "v_log_f32", "v_rcp_f32", "v_rsq_f32", "v_sqrt_f32")
def classify(ln):
    ln = ln.split(";")[0].strip()
    p = ln.split(None, 1)
    mn = p[0]; ops = split_ops(p[1]) if len(p) > 1 else []
    d = dict(mn=mn, w=set(), r=set(), kind="other", text=ln, passes=0, srcc=set(), ab=set())
    if mn.startswith("v_mfma") or mn.startswith("v_smfmac"):
        d["kind"] = "mfma"; d["w"] = regs(ops[0])
        d["passes"] = 8 if "32x32" in mn else (2 if "16x16x16" in mn else 4)
        if mn.startswith("v_smfmac"):
            d["srcc"] = regs(ops[0]); d["ab"] = regs(ops[1]) | regs(ops[2]) | regs(ops[3].split()[0])
        else:
            d["srcc"] = regs(ops[3].split()[0]); d["ab"] = regs(ops[1]) | regs(ops[2])
        d["r"] = d["srcc"] | d["ab"]
    elif mn.startswith("v_"):
        d["kind"] = "valu"
        if mn.startswith("v_cmp"):
            d["w"] = regs(ops[0]); [d["r"].update(regs(o)) for o in ops[1:]]
        elif mn.startswith("v_permlane"):
            d["w"] = regs(ops[0]) | regs(ops[1]); d["r"] = set(d["w"])
        elif mn.startswith("v_readfirstlane") or mn.startswith("v_readlane"):
            d["w"] = regs(ops[0]); [d["r"].update(regs(o)) for o in ops[1:]]
        else:
            d["w"] = regs(ops[0]); [d["r"].update(regs(o)) for o in ops[1:]]
            if "_co_" in mn: d["w"] |= regs(ops[1])
            if mn.startswith(("v_fmac", "v_dot2c", "v_pk_fmac")) or "dpp" in ln or "row_" in ln or "quad_perm" in ln: d["r"] |= regs(ops[0])
            if mn.startswith("v_cndmask") and len(ops) == 3: d["r"].add(("s", "vcc"))
    elif mn.startswith(("buffer_", "global_", "ds_")):
        d["kind"] = "mem"
        isload = ("load" in mn or "read" in mn or "bpermute" in mn or "swizzle" in mn)
        lds = ln.rstrip().endswith(" lds") or " lds " in ln or "load_lds" in mn
        if "atomic" in mn:
            [d["r"].update(regs(o)) for o in ops]
            if "sc0" in ln: d["w"] = regs(ops[0])
        elif isload and not lds:
            d["w"] = regs(ops[0]); [d["r"].update(regs(o)) for o in ops[1:]]
        else:
            [d["r"].update(regs(o)) for o in ops]
            if lds: d["r"].add(("s", "m0")); d["ldsdma"] = True
        if "store" in mn and ("x4" in mn or "x3" in mn):
            d["widestore"] = regs(ops[0]) if mn.startswith("buffer") else regs(ops[1])
    elif mn.startswith("s_"):
        d["kind"] = "salu"
        if mn in ("s_nop",): d["nop"] = int(ops[0], 0) + 1
        elif mn.startswith(("s_cmp", "s_waitcnt", "s_barrier", "s_cbranch", "s_branch", "s_sleep", "s_setprio", "s_endpgm")):
            [d["r"].update(regs(o)) for o in ops]
        else:
            d["w"] = regs(ops[0]); [d["r"].update(regs(o)) for o in ops[1:]]
            if "saveexec" in mn: d["w"].add(("s", "exec"))
    return d

def check(lines, name=""):
    ins = [classify(l) for l in lines if not (l.endswith(":") or l.startswith(".") or l.startswith(";"))]
    probs = []
    for i, c in enumerate(ins):
        dist = 0
        for j in range(i - 1, max(-1, i - 24), -1):
            p = ins[j]
            need = 0; why = ""
            t = 0; lm = None
            for q in range(j, i + 1):
                z = ins[q]
                if q > j:
                    t += ins[q-1].get("nop", 1)
                    if lm is not None:
                        if z["kind"] == "mfma": t = max(t, lm[0] + lm[1])
                        elif z["kind"] == "valu" and lm[2]: t = max(t, lm[0] + 3)
                if z["kind"] == "mfma": lm = (t, z["passes"], z["mn"].startswith("v_smf"))
            dist = t - 1
            pv = {x for x in p["w"] if x[0] in "va"}
            ps = {x for x in p["w"] if x[0] == "s"}
            if p["kind"] == "valu":
                if c["kind"] == "mfma" and pv & c["r"]: need, why = 2, "VALU->MFMA"
                if c["mn"].startswith("v_permlane") and pv & c["r"]: need, why = 2, "VALU->permlane"
                if c["kind"] == "valu" and ("dpp" in c["text"] or "row_" in c["text"] or "quad_perm" in c["text"]) and pv & c["r"]: need, why = 2, "VALU->DPP"
                if c["mn"].startswith(("v_readfirstlane", "v_readlane")) and pv & c["r"]: need, why = max(need, 1), "VALU->readlane"
                if p["mn"].startswith(TRANS) and c["kind"] in ("valu",) and pv & c["r"]: need, why = max(need, 1), "trans->VALU"
                if ps & c["r"]:
                    if c["kind"] == "mem": need, why = 5, "VALU sgpr->VMEM"
                    elif c["kind"] == "valu": need, why = max(need, 2), "VALU sgpr->VALU"
                if ("s", "exec") in ps and c["kind"] == "mfma": need, why = 4, "VALU exec->MFMA"
            if p["kind"] == "mfma":
                n = p["passes"]
                if c["kind"] == "mfma":
                    if pv & c["ab"]: need, why = n + 4, "MFMA D->A/B"
                    elif pv & c["srcc"] and not (pv == c["srcc"] and n == c["passes"]): need, why = n + 2, "MFMA D->C overlap"
                    elif pv & c["w"] and not (pv == c["srcc"]): need, why = n + 2, "MFMA WAW"
                elif c["kind"] in ("valu", "mem") and pv & (c["r"] | c["w"]): need, why = n + 4, "MFMA D->VALU/MEM"
                if c["kind"] == "valu" and p["srcc"] & c["w"]: need, why = max(need, n - 1), "MFMA C WAR"
            if p["kind"] == "salu" and ("s", "m0") in ps and c.get("ldsdma"): need, why = 1, "M0->LDSDMA"
            if p.get("widestore") and p["widestore"] & c["w"] and c["kind"] in ("valu", "mem", "mfma"): need, why = 2, "store data WAR"
            if need > dist:
                probs.append(f"{name}: [{why}] need {need} have {dist}: '{p['text']}' -> '{c['text']}'")
            if dist > 20: break
    return probs
```

```python
from common import *
from proj import *
from chain import f32
SPINW = 400000
def poll(a, name, load, ext, sleep=2):
    a(f"s_mov_b32 s57, {SPINW}")
    a.label(name)
    a(f"{load}\ns_waitcnt vmcnt(0)\nv_readfirstlane_b32 s56, v8\n{ext}\ns_cbranch_scc1 {name}_ok\ns_sleep {sleep}\ns_sub_u32 s57, s57, 1\ns_cbranch_scc0 {name}")
    a.label(name + "_ok")

def attn(a, flags=True):
    lanes(a)
    a(f"""s_lshr_b32 s41, s40, 3
    s_and_b32 s42, s40, 7
    s_lshl_b32 s43, s42, 2
    s_add_u32 s43, s43, s29
    s_mov_b32 s44, s41
    s_mov_b32 s58, {f32(0.08838834764831845)}
    s_mov_b32 s59, {f32(1.4426950408889634)}
    s_mov_b32 s62, 0xffff0000
    v_lshlrev_b32 v5, 2, v3
    v_mov_b32 v7, 0xce6e6b28""")
    for i in range(4): a(f"v_add_u32 v6, {i}, v5\nv_cmp_le_u32 s[{64+2*i}:{65+2*i}], v6, v2")
    if flags: poll(a, "L_at_pd", f"buffer_load_dword v8, off, s[8:11], 0 offset:{D_PD*4} sc1", "s_cmp_ge_u32 s56, 192", 8)
    a.label("L_at_loop")
    Q, K, KM, V, VM = 16, 48, 80, 96, 128
    a(f"""s_lshl_b32 s45, s44, 5
    s_add_u32 s45, s45, s43
    s_lshl_b32 s46, s45, 13
    s_lshl_b32 s47, s45, 12""")
    for base, ws in ((Q, WS_QX), (K, WS_KX), (V, WS_VX)):
        for hh in range(2):
            a(f"s_add_u32 s48, s46, {hex(ws + hh*4096)}")
            for i in range(4): a(f"buffer_load_dwordx4 {vr(base+hh*16+i*4,4)}, v4, s[4:7], s48 offen offset:{i*1024} sc1")
    if flags: poll(a, "L_at_cp", f"buffer_load_ubyte v8, off, s[8:11], s43 offset:{D_CP*4} sc1", "s_cmp_gt_u32 s56, s44", 1)
    for base, ws in ((KM, WS_KM), (VM, WS_VM)):
        a(f"s_add_u32 s48, s47, {hex(ws)}")
        for i in range(4): a(f"buffer_load_dwordx4 {vr(base+i*4,4)}, v4, s[4:7], s48 offen offset:{i*1024} sc1")
    S = 144
    def sreg(Tq, tl): return S + (Tq*3+tl)*4
    a("s_waitcnt vmcnt(8)")
    for ks in range(4):
        for Tq, tl in ((0, 0), (1, 0), (1, 1)):
            d = vr(sreg(Tq, tl), 4)
            a(f"v_mfma_f32_16x16x32_bf16 {d}, {vr(K+tl*16+ks*4,4)}, {vr(Q+Tq*16+ks*4,4)}, {'0' if ks == 0 else d}")
    a("s_waitcnt vmcnt(4)")
    for ks in range(4):
        for Tq in range(2):
            d = vr(sreg(Tq, 2), 4)
            a(f"v_mfma_f32_16x16x32_bf16 {d}, {vr(KM+ks*4,4)}, {vr(Q+Tq*16+ks*4,4)}, {'0' if ks == 0 else d}")
    a("s_nop 7")
    P = 168
    for Tq in range(2):
        tiles = (0, 2) if Tq == 0 else (0, 1, 2)
        rr = [sreg(Tq, tl) + i for tl in tiles for i in range(4)]
        def rnd():
            for x in rr[::2]: a(f"v_cvt_pk_bf16_f32 v{x+1}, v{x}, v{x+1}\nv_lshlrev_b32 v{x}, 16, v{x+1}\nv_and_b32 v{x+1}, s62, v{x+1}")
        rnd()
        for x in rr: a(f"v_mul_f32 v{x}, s58, v{x}")
        rnd()
        for i in range(4): a(f"v_cndmask_b32 v{sreg(Tq,Tq)+i}, v7, v{sreg(Tq,Tq)+i}, s[{64+2*i}:{65+2*i}]")
        a(f"v_max_f32 v9, v{rr[0]}, v{rr[1]}")
        for x in rr[2::2]: a(f"v_max3_f32 v9, v9, v{x}, v{x+1}")
        def xl(op):
            for sw in (16, 32): a(f"v_mov_b32 v10, v9\ns_nop 1\nv_permlane{sw}_swap_b32 v9, v10\ns_nop 1\n{op} v9, v9, v10")
        xl("v_max_f32")
        for x in rr: a(f"v_sub_f32 v{x}, v{x}, v9")
        for x in rr: a(f"v_mul_f32 v{x}, s59, v{x}")
        for x in rr: a(f"v_exp_f32 v{x}, v{x}")
        m = rr[-4:]
        a(f"v_add_f32 v9, v{m[0]}, v{m[1]}\nv_add_f32 v9, v9, v{m[2]}\nv_add_f32 v9, v9, v{m[3]}\nv_mul_f32 v9, 0.5, v9")
        for x in rr[:-4]: a(f"v_add_f32 v9, v9, v{x}")
        xl("v_add_f32")
        a("v_rcp_f32 v9, v9\ns_nop 0")
        for x in rr: a(f"v_mul_f32 v{x}, v{x}, v9")
        for tl in range(3):
            for i in range(2):
                d = P + Tq*8 + tl*2 + i
                if tl in tiles: a(f"v_cvt_pk_bf16_f32 v{d}, v{sreg(Tq,tl)+2*i}, v{sreg(Tq,tl)+2*i+1}")
                else: a(f"v_mov_b32 v{d}, 0")
    a(f"""s_lshl_b32 s48, s44, 18
    s_lshl_b32 s49, s43, 12
    s_add_u32 s48, s48, s49
    s_add_u32 s48, s48, {hex(WS_O)}
    s_add_u32 s49, s48, 0x20000
    s_waitcnt vmcnt(0)""")
    O = 184
    for Tq in range(2):
        for e in range(8): a(f"v_mfma_f32_16x16x32_bf16 {vr(O+Tq*32+e*4,4)}, {vr(V+e*4,4)}, {vr(P+Tq*8,4)}, 0")
        for e in range(8): a(f"v_mfma_f32_16x16x16_bf16 {vr(O+Tq*32+e*4,4)}, {vr(VM+e*2,2)}, {vr(P+Tq*8+4,2)}, {vr(O+Tq*32+e*4,4)}")
    a("s_nop 7")
    for Tq in range(2):
        for w in range(4):
            b = O+Tq*32+w*8
            for i in range(4): a(f"v_cvt_pk_bf16_f32 v{b+i}, v{b+i}, v{b+4+i}")
            a(f"buffer_store_dwordx4 {vr(b,4)}, v4, s[4:7], s{48+Tq} offen offset:{w*1024} sc1")
    a("s_add_u32 s44, s44, 4\ns_waitcnt vmcnt(0)")
    if flags:
        a(f"""s_barrier
        s_cmp_lg_u32 s29, 0
        s_cbranch_scc1 L_at_nf
        s_lshr_b32 s48, s44, 2
        s_mov_b64 exec, 1
        v_mov_b32 v8, s48
        buffer_store_byte v8, off, s[8:11], s40 offset:{D_OP*4} sc1
        s_mov_b64 exec, -1""")
        a.label("L_at_nf")
    a("s_cmp_lt_u32 s44, 64\ns_cbranch_scc1 L_at_loop\ns_waitcnt vmcnt(0)\ns_endpgm")

def oproj(a, flags=True):
    lanes(a)
    srd(a, 12, "Wo"); srd(a, 16, "out")
    a("""s_lshr_b32 s44, s40, 4
    s_and_b32 s42, s40, 15
    v_lshlrev_b32 v6, 13, v3
    v_lshl_add_u32 v6, v2, 2, v6
    s_lshl_b32 s46, s29, 20
    s_lshl_b32 s47, s42, 6
    s_add_u32 s46, s46, s47
    v_lshlrev_b32 v5, 11, v2
    v_lshl_add_u32 v5, v3, 4, v5
    v_add_u32 v5, s47, v5
    s_waitcnt lgkmcnt(0)""")
    load_frags(a, 12, 6, 1024, 46, 32, lambda ks, t: ("a", (ks*2+t)*4))
    a("s_lshl_b32 s50, s29, 11\ns_mov_b32 s51, 0\ns_barrier")
    a.label("L_op_loop")
    a(f"""s_lshr_b32 s45, s44, 1
    s_and_b32 s48, s45, 3
    s_lshl_b32 s48, s48, 3
    s_lshl_b32 s49, s29, 1
    s_add_u32 s48, s48, s49
    s_lshr_b32 s49, s45, 2""")
    if flags: poll(a, "L_op_w", f"buffer_load_ushort v8, off, s[8:11], s48 offset:{D_OP*4} sc1",
                   "s_and_b32 s58, s56, 0xff\ns_lshr_b32 s56, s56, 8\ns_min_u32 s56, s56, s58\ns_cmp_gt_u32 s56, s49", 1)
    a(f"s_lshl_b32 s48, s44, 17\ns_lshl_b32 s49, s29, 15\ns_add_u32 s48, s48, s49\ns_add_u32 s48, s48, {hex(WS_O)}")
    for i in range(32):
        if i % 4 == 0 and i: a("s_add_u32 s48, s48, 4096")
        a(f"buffer_load_dwordx4 {vr(128+i*4,4)}, v4, s[4:7], s48 offen offset:{(i%4)*1024} sc1")
    for ks in range(32):
        a(f"s_waitcnt vmcnt({31-ks})")
        for t in range(2):
            d = vr(16+t*4, 4)
            a(f"v_mfma_f32_16x16x32_bf16 {d}, {ar((ks*2+t)*4,4)}, {vr(128+ks*4,4)}, {'0' if ks == 0 else d}")
    a("""v_add_u32 v7, s51, v4
    v_add_u32 v9, s50, v7
    s_xor_b32 s51, s51, 0x2000
    s_nop 5
    ds_write_b128 v9, v[16:19]
    ds_write_b128 v9, v[20:23] offset:1024
    s_waitcnt lgkmcnt(0)
    s_barrier
    s_cmp_lg_u32 s29, 0
    s_cbranch_scc1 L_op_next""")
    for w in range(1, 4):
        for t in range(2): a(f"ds_read_b128 {vr(16+w*8+t*4,4)}, v7 offset:{w*2048+t*1024}")
    a("s_waitcnt lgkmcnt(0)")
    for w in range(1, 4):
        for i in range(8): a(f"v_add_f32 v{16+i}, v{16+i}, v{16+w*8+i}")
    for i in range(4): a(f"v_cvt_pk_bf16_f32 v{48+i}, v{16+i}, v{20+i}")
    a("s_lshl_b32 s48, s44, 15\nbuffer_store_dwordx4 v[48:51], v5, s[16:19], s48 offen")
    a.label("L_op_next")
    a("s_add_u32 s44, s44, 4\ns_cmp_lt_u32 s44, 128\ns_cbranch_scc1 L_op_loop\ns_waitcnt vmcnt(0)\ns_endpgm")
```

```python
from common import *
L_WO, L_KX, L_MEM, L_Q, L_K, L_O = 0, 131072, 147456, 155648, 157824, 147456
QSTR = 272
LDS_CHAIN = 163840
SPIN = 20000
import os
PB1, PB2, PB3, PD1, PD2, PD3 = eval(os.environ.get('PRM', '(4, 9, 2, 12, 0, 15)'))
CEXP = 0.08838834764831845 * 1.4426950408889634
import struct
def f32(x): return hex(struct.unpack("<I", struct.pack("<f", x))[0])

def roles(a, nchain_label, exit_label):
    a(f"""s_cmp_ge_u32 s2, 256
    s_cbranch_scc1 {exit_label}""")
    srd(a, 4, "ws"); srd(a, 8, "dbg")
    a("""s_getreg_b32 s31, hwreg(HW_REG_XCC_ID)
    s_and_b32 s31, s31, 7
    v_readfirstlane_b32 s29, v0
    s_lshr_b32 s29, s29, 6
    s_waitcnt lgkmcnt(0)
    s_cmp_lg_u32 s29, 0
    s_cbranch_scc1 L_role_wait
    s_mov_b64 exec, 1
    s_mov_b32 s32, 0
    v_mov_b32 v3, 0""")
    a.label("L_role_try")
    a("""s_add_u32 s33, s31, s32
    s_and_b32 s33, s33, 7
    s_lshl_b32 s34, s33, 2
    v_mov_b32 v1, 1
    buffer_atomic_add v1, off, s[8:11], s34 sc0
    s_waitcnt vmcnt(0)
    v_readfirstlane_b32 s35, v1
    s_cmp_lt_u32 s35, 32
    s_cbranch_scc1 L_role_got
    s_add_u32 s32, s32, 1
    s_cmp_lt_u32 s32, 8
    s_cbranch_scc1 L_role_try
    s_mov_b32 s33, 8
    s_mov_b32 s35, 0""")
    a.label("L_role_got")
    a("""s_lshl_b32 s33, s33, 5
    s_add_u32 s33, s33, s35
    s_lshl_b32 s32, s32, 16
    s_or_b32 s33, s33, s32
    v_mov_b32 v1, s33
    ds_write_b32 v3, v1
    s_mov_b64 exec, -1
    s_waitcnt lgkmcnt(0)""")
    a.label("L_role_wait")
    a(f"""s_barrier
    v_mov_b32 v3, 0
    ds_read_b32 v1, v3
    s_waitcnt lgkmcnt(0)
    v_readfirstlane_b32 s30, v1
    s_barrier
    s_lshr_b32 s36, s30, 16
    s_and_b32 s30, s30, 0xffff
    s_cmp_ge_u32 s30, 256
    s_cbranch_scc1 {exit_label}
    s_cmp_ge_u32 s30, 32
    s_cbranch_scc1 {nchain_label}""")

A0, AQ, AK, AV, KXR, QF, VX, SX = 0, 32, 40, 48, 56, 88, 104, 112
IDX, L16, WOB, QKW, QKR, INS, OX, MST = 120, 121, 122, 123, 124, 125, 126, 127
INL = 28
def wreg(mat, sg, t):
    if mat == 2: return vr(128 + sg*16 + t*8, 8)
    return ar(mat*128 + sg*16 + t*8, 8)

def dma():
    o = []
    for i, sg in enumerate((65, 66)):
        o += [f"s_add_u32 m0, s73, {i*8192}", "s_nop 0"]
        o += [f"buffer_load_dwordx4 v{L16}, s[4:7], s{sg} offen offset:{of} sc1 lds" for of in (0, 1024)]
        o += [f"s_add_u32 s{sg}, s{sg}, {32*8192}"]
    return o

def chain(a, ts=False, merged=False, nsteps=64):
    a("s_mov_b32 s28, s30")
    srd(a, 12, "Wq"); srd(a, 16, "Wk"); srd(a, 20, "Wv"); srd(a, 24, "Wo"); srd(a, 40, "mem0")
    a(f"""v_and_b32 v1, 63, v0
    v_lshlrev_b32 v{L16}, 4, v1
    v_and_b32 v2, 15, v1
    v_lshrrev_b32 v3, 4, v1
    s_lshl_b32 s37, s29, 15
    v_add_u32 v{WOB}, s37, v{L16}
    v_mov_b32 v4, 0x4444
    v_mov_b32 v5, 0xeeee
    v_cmp_gt_u32 vcc, 8, v2
    s_nop 1
    v_cndmask_b32 v{IDX}, v5, v4, vcc""")
    a(f"""v_and_b32 v4, 1, v3
    v_lshlrev_b32 v4, 2, v4
    v_and_b32 v5, 2, v3
    v_add_u32 v4, v4, v5
    v_mul_u32_u24 v4, {QSTR}, v4
    v_lshl_add_u32 v4, v2, 2, v4
    s_lshl_b32 s37, s29, 6
    s_add_u32 s37, s37, {L_Q}
    v_add_u32 v{QKW}, s37, v4""")
    a(f"""v_and_b32 v4, 7, v2
    v_mul_u32_u24 v4, {QSTR}, v4
    v_lshl_add_u32 v4, v3, 4, v4
    v_add_u32 v{QKR}, {L_Q}, v4""")
    a(f"""v_lshrrev_b32 v4, 1, v3
    v_lshlrev_b32 v4, 2, v4
    v_lshrrev_b32 v5, 2, v2
    v_add_u32 v4, v4, v5
    v_lshlrev_b32 v4, 1, v4
    v_and_b32 v5, 1, v3
    v_add_u32 v4, v4, v5
    v_lshlrev_b32 v4, 11, v4
    v_and_b32 v5, 3, v2
    v_lshl_add_u32 v4, v5, 4, v4
    s_lshl_b32 s37, s29, 16
    s_lshl_b32 s38, s28, 6
    s_add_u32 s37, s37, s38
    v_add_u32 v{INS}, s37, v4""")
    a(f"""v_lshl_add_u32 v4, v3, 2, v5
    v_lshlrev_b32 v4, 6, v4
    v_lshrrev_b32 v5, 2, v2
    v_lshl_add_u32 v4, v5, 4, v4
    s_lshl_b32 s37, s28, 2
    s_add_u32 s37, s37, s29
    s_lshl_b32 s38, s37, 11
    s_mov_b32 s74, s38
    v_add_u32 v{INL}, s38, v4""")
    a(f"""v_lshlrev_b32 v4, 4, v2
    v_lshl_add_u32 v4, v3, 2, v4
    s_lshl_b32 s38, s37, 6
    v_add_u32 v{MST}, s38, v4""")
    a("v_cmp_gt_u32 s[44:45], 4, v2")
    a("v_and_b32 v4, 7, v2\nv_lshrrev_b32 v4, 1, v4")
    for i in range(4): a(f"v_cmp_eq_u32 s[{46+2*i}:{47+2*i}], {i}, v4")
    a("v_and_b32 v4, 1, v2\nv_cmp_eq_u32 s[54:55], 1, v4")
    a("v_mov_b32 v8, -1\nv_mov_b32 v9, -1\nv_mov_b32 v10, -1\nv_mov_b32 v11, -1")
    a(f"s_mov_b32 s56, {hex(WS_INBOX)}\ns_mov_b32 s57, {hex(WS_INBOX+0x40000)}\ns_waitcnt lgkmcnt(0)")
    for sl in (56, 57):
        for o in (0, 1024): a(f"buffer_store_dwordx4 v[8:11], v{INL}, s[4:7], s{sl} offen offset:{o} sc1")
    a("s_mov_b64 exec, s[44:45]")
    for sl in range(4):
        a(f"s_mov_b32 s58, {hex(WS_MEMF + sl*8192)}\nbuffer_store_dword v8, v{MST}, s[4:7], s58 offen sc1")
    a("s_mov_b64 exec, -1\ns_waitcnt vmcnt(0)\ns_barrier")
    a("""s_cmp_lg_u32 s29, 0
    s_cbranch_scc1 L_ch_noinc
    s_cmp_lg_u32 s36, 0
    s_cselect_b32 s58, 0x10001, 1
    s_mov_b64 exec, 1
    v_mov_b32 v8, s58
    buffer_atomic_add v8, off, s[8:11], 0 offset:32
    s_mov_b64 exec, -1""")
    a.label("L_ch_noinc")
    a("""v_lshrrev_b32 v4, 1, v3
    v_and_b32 v5, 1, v3
    v_lshlrev_b32 v6, 4, v4
    v_lshl_add_u32 v6, v5, 2, v6
    v_lshlrev_b32 v6, 13, v6
    v_lshl_add_u32 v6, v2, 2, v6
    s_lshl_b32 s37, s28, 8
    s_lshl_b32 s38, s29, 6
    s_add_u32 s37, s37, s38
    v_add_u32 v6, s37, v6
    v_lshlrev_b32 v7, 3, v4
    v_lshl_add_u32 v7, v5, 2, v7
    v_lshlrev_b32 v7, 10, v7
    v_lshl_add_u32 v7, v2, 2, v7
    s_lshl_b32 s37, s28, 17
    s_lshl_b32 s38, s29, 8
    s_add_u32 s37, s37, s38
    v_add_u32 v7, s37, v7
    s_mov_b32 s60, 0x05040100
    s_mov_b32 s61, 0x07060302
    s_lshl_b32 s59, s29, 1""")
    batches = [(m, sg) for m in range(3) for sg in range(8)] + [(3, i) for i in range(8)]
    def issue(bi):
        m, sg = batches[bi]; base = 16 + (bi % 3) * 16
        if m < 3:
            a(f"s_xor_b32 s62, s59, {sg}\ns_lshl_b32 s62, s62, 19")
            for rho in range(8):
                for b in range(2):
                    row = 32*(rho >> 2) + 8*(rho & 1) + 2*((rho >> 1) & 1) + b
                    a(f"s_add_u32 s63, s62, {row*8192}")
                    a(f"buffer_load_dword v{base+2*rho+b}, v6, s[{12+4*m}:{15+4*m}], s63 offen")
        else:
            u, ks = sg & 1, sg >> 1
            a(f"s_add_u32 s62, s29, {ks}\ns_and_b32 s62, s62, 3\ns_lshl_b32 s62, s62, 15")
            for rho in range(8):
                for b in range(2):
                    row = 16*(rho >> 2) + 2*((rho >> 1) & 1) + b
                    a(f"s_add_u32 s63, s62, {row*1024 + u*128 + (rho & 1)*64}")
                    a(f"buffer_load_dword v{base+2*rho+b}, v7, s[24:27], s63 offen")
    def consume(bi):
        m, sg = batches[bi]; base = 16 + (bi % 3) * 16
        for rho in range(8):
            for t in range(2):
                d = 128 + sg*16 + t*8 + rho if m == 2 else 64 + t*8 + rho
                a(f"v_perm_b32 v{d}, v{base+2*rho+1}, v{base+2*rho}, s{60+t}")
        if m < 2:
            for i in range(16): a(f"v_accvgpr_write_b32 a{m*128+sg*16+i}, v{64+i}")
        if m == 3:
            for i in range(4): a(f"ds_write_b128 v{WOB}, v[{64+4*i}:{67+4*i}] offset:{sg*4096 + i*1024}")
            a("s_waitcnt lgkmcnt(0)")
    n = len(batches)
    issue(0); issue(1)
    for bi in range(n):
        if bi + 2 < n: issue(bi + 2)
        a(f"s_waitcnt vmcnt({16*min(2, n-1-bi)})")
        consume(bi)
    a(f"""s_lshl_b32 s37, s28, 13
    s_lshl_b32 s38, s29, 11
    s_add_u32 s37, s37, s38
    s_add_u32 s65, s37, {hex(WS_KX)}
    s_add_u32 s66, s37, {hex(WS_VX)}
    s_lshr_b32 s37, s37, 1
    s_add_u32 s67, s37, {hex(WS_KM)}
    s_add_u32 s68, s37, {hex(WS_VM)}
    s_add_u32 s73, s38, {L_KX}
    s_mov_b32 s64, 0
    s_mov_b32 s72, {hex(WS_INBOX)}""")
    if merged: merged["wait_proj"](a, 0)
    a(f"s_sub_u32 s67, s67, {32*4096}\ns_sub_u32 s68, s68, {32*4096}")
    for x in dma(): a(x)
    a("""v_and_b32 v4, 7, v2
    v_lshlrev_b32 v4, 10, v4
    v_lshl_add_u32 v4, v3, 5, v4
    v_lshrrev_b32 v5, 3, v2
    v_lshl_add_u32 v4, v5, 4, v4
    s_lshl_b32 s37, s29, 8
    buffer_load_dwordx4 v[8:11], v4, s[40:43], s37 offen
    buffer_load_dwordx4 v[12:15], v4, s[40:43], s37 offen offset:128""")
    a(f"s_mov_b32 s75, {SPIN*10}")
    a.label("L_ch_rdy")
    a("""buffer_load_dword v16, off, s[8:11], 0 offset:32 sc1
    s_waitcnt vmcnt(0)
    v_readfirstlane_b32 s37, v16
    s_and_b32 s38, s37, 0xffff
    s_sub_u32 s75, s75, 1
    s_cselect_b32 s38, 32, s38
    s_cmp_lt_u32 s38, 32
    s_cbranch_scc1 L_ch_rdy
    s_barrier""")
    for i in range(8): a(f"v_mov_b32 v{i}, v{8+i}")
    a(f"s_lshl_b32 s76, s29, 11\ns_add_u32 s77, s76, {L_MEM}\ns_mov_b32 s78, {f32(CEXP)}\ns_lshl_b32 s79, s29, 6")
    a(f"s_lshl_b32 s38, s29, 10\ns_add_u32 s38, s38, {L_O}\nv_add_u32 v{OX}, s38, v{L16}\ns_mov_b32 s39, 0")
    a("s_lshr_b32 s37, s37, 16\ns_cmp_lg_u32 s37, 0\ns_cbranch_scc1 L_slow_entry")
    loop(a, "f", "", ts, merged, nsteps)
    a.label("L_slow_entry")
    loop(a, "s", " sc1", False, merged, nsteps)


def loop(a, tag, sc, ts, merged, nsteps):
    def T(i):
        if ts and i in ts: a(f"s_memtime s[{80+2*i}:{81+2*i}]")
    TB = 118
    KOFF = L_K - L_Q; KF = 0
    def pre():
        o = [f"v_add_u32 v{TB}, s79, v{QKR}", f"v_add_u32 v{TB+1}, s77, v{L16}", f"ds_read_b128 {vr(QF,4)}, v{TB} offset:{KOFF}"]
        for i in range(24): o.append(f"v_mov_b32 v{AQ+i}, 0")
        for j in (1, 2, 3): o.append(f"v_xor_b32 v{SX+j}, {j*2048}, v{TB+1}")
        o += [f"v_add_u32 v{TB}, {L_KX}, v{L16}", f"v_add_u32 v{SX}, s73, v{L16}"]
        if merged: o += ["s_max_u32 s37, s64, 1", "s_sub_u32 s37, s37, 1", "v_mov_b32 v117, s37"]
        return o
    def gaps(main, X, V):
        for i, m in enumerate(main):
            a(m)
            for x in X.get(i, []): a(x)
            for x in V.get(i, []): a(x)
    def spread(seq, g0, per):
        d = {}; k = 0
        for g, n in zip(range(g0, 99), per):
            d[g] = seq[k:k+n]; k += n
        assert k >= len(seq), (k, len(seq))
        return d
    def merge(*ds):
        o = {}
        for d in ds:
            for k, v in d.items(): o.setdefault(k, []).extend(v)
        return o
    for x in pre(): a(x)
    a(f"s_branch L{tag}_body")
    a.label(f"L{tag}_p2")
    a(f"""buffer_load_dwordx4 v[0:3], v{L16}, s[4:7], s69 offen sc1
    buffer_load_dwordx4 v[4:7], v{L16}, s[4:7], s69 offen offset:1024 sc1
    s_sub_u32 s75, s75, 1
    s_cselect_b64 s[56:57], 0, -1
    s_waitcnt vmcnt(2)
    v_max_u32 v8, v0, v4
    v_cmp_eq_u32 vcc, -1, v8
    s_and_b64 vcc, vcc, s[56:57]
    s_cbranch_vccnz L{tag}_p2""")
    a.label(f"L{tag}_body")
    T(0)
    def sm(mat, sg, t):
        acc = (AQ, AK, AV)[mat] + 4*t
        return f"v_smfmac_f32_16x16x64_bf16 {vr(acc,4)}, {vr(A0+4*sg,4)}, {wreg(mat,sg,t)}, v{IDX}"
    def mf(d, x, y, c): return f"v_mfma_f32_16x16x32_bf16 {vr(d,4)}, {vr(x,4)}, {vr(y,4)}, {c}"
    def mf16(d, x, y, c): return f"v_mfma_f32_16x16x16_bf16 {vr(d,4)}, {vr(x,2)}, {vr(y,2)}, {c}"
    rdA = [f"ds_read_b128 {vr(A0+4*sg,4)}, v{SX+(sg>>1)} offset:{(sg&1)*1024}" for sg in range(2, 8)]
    main = [sm(m, sg, t) for m in (0, 1, 2) for sg in (0, 1) for t in (0, 1)]
    X = {0: [f"ds_write_b128 v{TB+1}, v[0:3]", f"ds_write_b128 v{TB+1}, v[4:7] offset:1024"],
         1: ["s_waitcnt lgkmcnt(2)", f"buffer_store_dwordx4 {vr(QF,4)}, v{L16}, s[4:7], s67 offen sc1"],
         2: [f"buffer_store_dwordx4 {vr(VX,4)}, v{L16}, s[4:7], s68 offen sc1", f"s_add_u32 s67, s67, {32*4096}"], 3: [f"s_add_u32 s68, s68, {32*4096}"],
         PB1: ["s_waitcnt lgkmcnt(0)", "s_barrier"] + rdA[:2], PB1+1: rdA[2:4], PB1+2: rdA[4:6], 11: ["s_waitcnt lgkmcnt(5)"]}
    if merged: X[PB1+4] = merged["flag"](tag)
    gaps(main, X, {})
    main = [sm(0, sg, t) for sg in range(2, 8) for t in (0, 1)]
    rk = [f"ds_read_b128 {vr(KXR+4*i,4)}, v{TB} offset:{i*1024}" for i in range(8)] + [f"ds_read_b128 {vr(VX+4*t,4)}, v{SX} offset:{8192+t*1024}" for t in range(2)]
    X = {1: ["s_waitcnt lgkmcnt(4)"], 3: ["s_waitcnt lgkmcnt(3)"], 4: rk[0:2], 5: ["s_waitcnt lgkmcnt(2)"], 6: rk[2:4], 7: rk[4:6], 8: rk[6:8], 9: rk[8:10]}
    gaps(main, X, {})
    T(1)
    def hsum(acc):
        s = []
        for t in (0, 1):
            for i in (0, 1): s.append(f"v_permlane32_swap_b32 v{acc+4*t+i}, v{acc+4*t+i+2}")
        for i in (0, 1):
            for t in (0, 1): s.append(f"v_add_f32 v{acc+4*t+i}, v{acc+4*t+i}, v{acc+4*t+i+2}")
        for i in (0, 1): s.append(f"v_cvt_pk_bf16_f32 v{acc+i}, v{acc+i}, v{acc+4+i}")
        return s
    def hwr(acc, off): return [f"ds_write_b32 v{QKW}, v{acc+i} offset:{off+i*QSTR}" for i in (0, 1)]
    main = [sm(1, sg, t) for sg in range(2, 8) for t in (0, 1)]
    dm = dma()
    X = {4: hwr(AQ, 0), PB2: ["s_waitcnt lgkmcnt(0)", "s_barrier"] + [f"ds_read_b128 {vr(QF+4*ks,4)}, v{QKR} offset:{ks*64}" for ks in range(4)]}
    gaps(main, X, spread(hsum(AQ), 0, [2, 2, 4, 2]))
    T(2)
    NV1 = 6
    vv = [sm(2, sg, t) for sg in range(2, 8) for t in (0, 1)]
    X = {0: (merged["wait_proj_loop"](tag) if merged else []) + dm[0:3], 1: dm[3:6], 2: dm[7:9], 3: dm[9:], 4: hwr(AK, KOFF), 5: ["s_waitcnt lgkmcnt(5)"]}
    gaps(vv[:NV1], X, spread(hsum(AK), 0, [2, 2, 4, 2]))
    main = []
    for ks in range(4):
        for Tt in (0, 1): main.append(mf(SX+4*Tt, KXR+16*Tt+4*ks, QF+4*ks, "0" if ks == 0 else vr(SX+4*Tt, 4)))
    ONE, HALF, MX, T1 = AK+4, AK+2, AK, AK+1
    X = {1: ["s_waitcnt lgkmcnt(4)"],
         PB3: ["s_waitcnt vmcnt(6) lgkmcnt(0)", "s_barrier"] + [f"ds_read_b128 {vr(KF+4*ks,4)}, v{QKR} offset:{KOFF+ks*64}" for ks in range(4)]}
    V = {0: [f"v_mov_b32 v{ONE}, 0x3f803f80", f"v_mov_b32 v{ONE+1}, 0x3f803f80"], 4: [f"v_mov_b32 v{ONE+2}, 0x3f803f80", f"v_mov_b32 v{ONE+3}, 0x3f803f80"],
         5: [f"v_mov_b32 v{HALF}, 0x3f003f00", f"v_mov_b32 v{HALF+1}, 0x3f003f00"]}
    gaps(main, X, V)
    T(3)
    SM, LA = AQ, AQ+4
    WB = [KXR, KXR+8, KXR+16, KXR+24, QF, QF+8, KF, KF+8]
    def wo_rd(op):
        b = WB[op % 8]
        return [f"ds_read_b128 {vr(b,4)}, v{WOB} offset:{op*2048}", f"ds_read_b128 {vr(b+4,4)}, v{WOB} offset:{op*2048+1024}"]
    smm = [mf(SM, KF+4*ks, QF+4*ks, "0" if ks == 0 else vr(SM, 4)) for ks in range(4)]
    vv = vv[NV1:]
    main = [vv[0], vv[1], smm[0], smm[1], smm[2], smm[3], vv[2], vv[3], vv[4], vv[5]]
    seq1 = [f"v_max3_f32 v{MX}, v{SX}, v{SX+1}, v{SX+2}", f"v_max3_f32 v{T1}, v{SX+3}, v{SX+4}, v{SX+5}", f"v_max3_f32 v{MX}, v{MX}, v{SX+6}, v{SX+7}",
            f"v_max_f32 v{MX}, v{MX}, v{T1}", f"v_max_f32 v{T1}, v{MX}, v{T1}", f"v_permlane32_swap_b32 v{MX}, v{T1}", f"v_max_f32 v{MX}, v{MX}, v{T1}"]
    seq2 = [f"v_max3_f32 v{MX}, v{MX}, v{SM}, v{SM+1}", f"v_max3_f32 v{T1}, v{MX}, v{SM+2}, v{SM+3}", f"v_max3_f32 v{MX}, v{MX}, v{SM+2}, v{SM+3}",
            f"v_permlane16_swap_b32 v{MX}, v{T1}", f"v_max_f32 v{MX}, v{MX}, v{T1}", f"v_mul_f32 v{T1}, s78, v{MX}"]
    sv = [SX+i for i in range(8)] + [SM+i for i in range(4)]
    for r in sv: seq2.append(f"v_fma_f32 v{r}, v{r}, s78, -v{T1}")
    X = {0: wo_rd(0), 1: wo_rd(1) + ["s_waitcnt lgkmcnt(7)"], 2: ["s_waitcnt lgkmcnt(6)"], 3: ["s_waitcnt lgkmcnt(5)"], 4: ["s_waitcnt lgkmcnt(4)"], 5: wo_rd(2),
         6: wo_rd(3) + wo_rd(4), 7: wo_rd(5), 8: wo_rd(6), 9: wo_rd(7)}
    V = merge(spread(seq1, 1, [1, 2, 2, 1, 1]), spread(seq2, 7, [3, 3, 12]))
    gaps(main, X, V)
    for r in sv: a(f"v_exp_f32 v{r}, v{r}")
    for i in range(4): a(f"v_cvt_pk_bf16_f32 v{SX+i}, v{SX+2*i}, v{SX+2*i+1}")
    for i in range(2): a(f"v_cvt_pk_bf16_f32 v{SM+i}, v{SM+2*i}, v{SM+2*i+1}")
    T(4)
    OA = AK; DD = [16, 20, 24, 28]
    cv = [f"v_cvt_pk_bf16_f32 v{AV+2*t+i}, v{AV+4*t+2*i}, v{AV+4*t+2*i+1}" for t in (0, 1) for i in (0, 1)]
    zz = [f"v_mov_b32 v{16+i}, 0" for i in range(16)]
    main = [mf(LA, ONE, SX, "0"), mf(OA+4, VX+4, SX, "0"), mf16(LA, HALF, SM, vr(LA, 4)), mf(OA, VX, SX, "0"),
            mf16(OA+4, AV+2, SM, vr(OA+4, 4)), mf16(OA, AV, SM, vr(OA, 4))]
    X = {5: [f"s_cmp_eq_u32 s64, {nsteps-1}", f"s_cbranch_scc1 L{tag}_end"]}
    V = {0: cv[:2], 1: cv[2:], 2: zz[:1], 3: zz[1:3], 4: zz[3:4] + [f"v_rcp_f32 v{LA}, v{LA}"], 5: zz[4:8]}
    gaps(main, X, V)
    for i in range(4):
        a(f"v_mul_f32 v{OA+4+i}, v{OA+4+i}, v{LA}\nv_mul_f32 v{OA+i}, v{OA+i}, v{LA}")
    for i in range(4): a(f"v_cvt_pk_bf16_f32 v{OA+i}, v{OA+i}, v{OA+4+i}")
    a(f"ds_write_b128 v{OX}, {vr(OA,4)}\nds_write_b128 v{OX}, {vr(OA,4)} offset:4096")
    for x in zz[8:]: a(x)
    T(5)
    OF = [OA, SX, SX+4, SM]
    order = [0, 1, 2, 3, 4, 5, 6, 7, 8, 9, 12, 13, 10, 11, 14, 15]
    main = [f"v_smfmac_f32_16x16x64_bf16 {vr(DD[op&3],4)}, {vr(OF[op>>2],4)}, {vr(WB[op%8],8)}, v{IDX}" for op in order]
    PK = AV
    X = {1: ["s_waitcnt lgkmcnt(0)", "s_barrier"] + [f"ds_read_b128 {vr(OF[j],4)}, v{OX} offset:{j*1024}" for j in (1, 2, 3)] + wo_rd(8),
         2: wo_rd(9), 3: wo_rd(10) + ["s_waitcnt lgkmcnt(8)"], 4: wo_rd(11), 5: wo_rd(12), 6: wo_rd(13), 7: wo_rd(14) + ["s_waitcnt lgkmcnt(12)"],
         8: wo_rd(15) + ["s_waitcnt lgkmcnt(12)"], 9: ["s_waitcnt lgkmcnt(6)"], 10: ["s_waitcnt lgkmcnt(4)"], 13: ["s_waitcnt lgkmcnt(2)", "s_add_u32 s37, s72, 0x8000"],
         14: ["s_waitcnt lgkmcnt(0)"]}
    def pk(u, dst): return [f"v_cvt_pk_bf16_f32 v{dst+2*aa+i}, v{DD[2*u+aa]+2*i}, v{DD[2*u+aa]+2*i+1}" for aa in (0, 1) for i in (0, 1)]
    tagop = lambda r: f"v_and_or_b32 v{r}, v{r}, -2, s39"
    p0 = pk(0, PK)
    V = {12: p0[:1], 13: [tagop(PK), p0[1]], 14: p0[2:]}
    for i in range(4): V[4+i] = [f"v_mov_b32 v{VX+i}, v{AV+i}"]
    X[15] = [f"buffer_store_dwordx4 {vr(PK,4)}, v{INS}, s[4:7], s72 offen{sc}", "s_nop 1"]
    gaps(main, X, V)
    p1 = pk(1, PK+4)
    a(p1[0]); a(tagop(PK+4)); a(p1[1]); a('s_nop 1'); a(p1[2]); a(p1[3])
    a(f"buffer_store_dwordx4 {vr(PK+4,4)}, v{INS}, s[4:7], s37 offen{sc}")
    T(6)
    a(f"""v_and_b32 v8, 0x330, v{L16}
    v_and_b32 v9, 0x30, v{L16}
    v_lshl_add_u32 v8, v9, 1, v8
    v_add_u32 v8, v9, v8
    v_bfe_u32 v9, v{L16}, 6, 2
    v_lshl_add_u32 v{INL}, v9, 4, v8
    s_add_u32 s58, s72, s74
    s_mov_b32 s75, {SPIN}""")
    a(f"v_mov_b32 v4, 0x3f80\nv_mov_b32 v5, 0x3f800000\nv_cndmask_b32 v4, v4, v5, s[54:55]")
    for i in range(4): a(f"v_cndmask_b32 v{i}, 0, v4, s[{46+2*i}:{47+2*i}]")
    a(f"""v_mov_b32 v24, -1
    s_add_u32 s64, s64, 1
    s_and_b32 s37, s64, 3
    s_lshl_b32 s37, s37, 13
    s_add_u32 s70, s37, {hex(WS_MEMF)}
    s_add_u32 s69, s70, s76
    s_xor_b32 s71, s70, 0x4000""")
    pr = pre()
    for x in pr[:PD1]: a(x)
    a(f"""buffer_load_dwordx4 v[8:11], v{INL}, s[4:7], s58 offen sc1
    buffer_load_dwordx4 v[12:15], v{INL}, s[4:7], s58 offen offset:1024 sc1""")
    for x in pr[PD1:]: a(x)
    a.label(f"L{tag}_p1")
    a(f"""buffer_load_dwordx4 v[8:11], v{INL}, s[4:7], s58 offen sc1
    buffer_load_dwordx4 v[12:15], v{INL}, s[4:7], s58 offen offset:1024 sc1
    s_sub_u32 s75, s75, 1
    s_cselect_b64 s[56:57], 0, -1
    s_waitcnt vmcnt(2)
    v_bitop3_b32 v16, v8, v12, s39 bitop3:0x7e
    v_mfma_f32_16x16x32_bf16 v[4:7], v[8:11], v[0:3], 0
    v_and_b32 v16, 1, v16
    v_cmp_ne_u32 vcc, 0, v16
    v_mfma_f32_16x16x32_bf16 v[4:7], v[12:15], v[0:3], v[4:7]
    s_and_b64 vcc, vcc, s[56:57]
    s_cbranch_vccnz L{tag}_p1
    s_nop 5
    v_add_f32 v4, v4, v5
    v_add_f32 v6, v6, v7
    v_add_f32 v4, v4, v6
    s_nop 1
    v_mov_b32_dpp v5, v4 row_shl:4 row_mask:0xf bank_mask:0xf
    s_mov_b64 exec, s[44:45]
    v_cvt_pk_bf16_f32 v17, v4, v5
    buffer_store_dword v17, v{MST}, s[4:7], s70 offen{sc}
    buffer_store_dword v24, v{MST}, s[4:7], s71 offen{sc}
    s_mov_b64 exec, -1
    s_xor_b32 s72, s72, 0x40000
    s_lshr_b32 s39, s64, 1
    s_and_b32 s39, s39, 1
    s_mov_b32 s75, {SPIN}""")
    T(7)
    if merged: merged["publish"](a, tag)
    if ts:
        a("s_waitcnt lgkmcnt(0)\ns_mov_b64 exec, 1")
        for i in range(8): a(f"v_mov_b32 v{16+i}, s{80+2*i}")
        a(f"s_lshl_b32 s37, s28, 2\ns_add_u32 s37, s37, s29\ns_lshl_b32 s37, s37, 6\ns_add_u32 s37, s37, s64\ns_lshl_b32 s37, s37, 5\ns_add_u32 s37, s37, {hex(WS_TS)}")
        a("buffer_store_dwordx4 v[16:19], off, s[4:7], s37\nbuffer_store_dwordx4 v[20:23], off, s[4:7], s37 offset:16\ns_mov_b64 exec, -1")
    if PD2: a(f"s_nop {PD2}")
    a(f"""buffer_load_dwordx4 v[0:3], v{L16}, s[4:7], s69 offen sc1
    buffer_load_dwordx4 v[4:7], v{L16}, s[4:7], s69 offen offset:1024 sc1""")
    if PD3: a(f"s_nop {PD3}\ns_nop {PD3}")
    a(f"s_branch L{tag}_p2")
    a.label(f"L{tag}_end")
    for x in pre()[:3]: a(x)
    a(f"buffer_store_dwordx4 {vr(AV,4)}, v{L16}, s[4:7], s68 offen sc1\ns_waitcnt lgkmcnt(0)")
    a(f"buffer_store_dwordx4 {vr(QF,4)}, v{L16}, s[4:7], s67 offen sc1")
    a("s_waitcnt vmcnt(0)")
    if merged: merged["final"](a, tag)
    else: a("s_endpgm")
```

```python
from asmlib import *
NAME = "concat_heads__memory_aug_recurrent_mem_tr__ssm_conv_h3__prompt"
WS_QX, WS_KX, WS_VX = 0x0, 0x1000000, 0x2000000
WS_KM, WS_VM = 0x3100000, 0x3a00000
WS_INBOX, WS_MEMF = 0x4400000, 0x4500000
WS_TS = 0x4600000
WS_FL = 0x4700000
WS_O = 0x5000000
WS_KV = 0x6000000
KA = dict(x=0, mem0=8, Wq=16, Wk=24, Wv=32, Wo=40, q=56, k=64, v=72, shk=80, ssk=88, D=96, out=104, dbg=112, ws=120)
SIZES = dict(x=2048*512*2, mem0=8192, Wq=512*4096*2, Wk=512*4096*2, Wv=512*4096*2, Wo=512*4096*2, q=2048*512*2, k=2048*512*2,
             v=2048*512*2, shk=4096, ssk=512*2048*2, D=1024, out=2048*1024*2, dbg=256, ws=0x10000000)

def srd(a, s, name):
    a(f"s_load_dwordx2 s[{s}:{s+1}], s[0:1], {KA[name]}")
    a(f"s_mov_b32 s{s+2}, {hex(SIZES[name])}")
    a(f"s_mov_b32 s{s+3}, 0x00020000")

def weave(main, side):
    out = []
    d = {}
    for p, ins in side: d.setdefault(p, []).append(ins)
    for ins in d.get(-1, []): out.append(ins)
    for i, m in enumerate(main):
        out.append(m)
        for ins in d.get(i, []): out.append(ins)
    for p in sorted(d):
        if p >= len(main): out += d[p]
    return out

def kernel_text(label, body):
    return (f".globl {label}\n.p2align 8\n.type {label},@function\n{label}:\n" + body)

def descriptor(label, vgpr=512, acc=256, sgpr=102):
    return (f".p2align 6\n.amdhsa_kernel {label}\n  .amdhsa_next_free_vgpr {vgpr}\n  .amdhsa_next_free_sgpr {sgpr}\n"
            f"  .amdhsa_accum_offset {acc}\n  .amdhsa_group_segment_fixed_size 0\n  .amdhsa_kernarg_size 128\n"
            "  .amdhsa_user_sgpr_count 2\n  .amdhsa_user_sgpr_kernarg_segment_ptr 1\n  .amdhsa_system_sgpr_workgroup_id_x 1\n"
            ".end_amdhsa_kernel\n")

def header(launch_lines):
    ref = open(f"cdna_kernels/{NAME}.s.ref").read().split("\n")
    out = []
    for ln in ref:
        if not ln.startswith(";"): break
        if ln.startswith("; @launch"): out += launch_lines
        else: out.append(ln)
    return "\n".join(out) + '\n.amdgcn_target "amdgcn-amd-amdhsa--gfx950"\n.text\n'
```

```python
from common import *
XS, XCH, KSTR = 80, 7680, 4288
L_X, L_KC = 2560, 64000
def conv(a):
    srd(a, 12, "k"); srd(a, 16, "v"); srd(a, 20, "q"); srd(a, 24, "out"); srd(a, 32, "ssk")
    a(f"""s_load_dwordx2 s[36:37], s[0:1], {KA['shk']}
    s_load_dwordx2 s[38:39], s[0:1], {KA['D']}
    s_lshl_b32 s41, s40, 6
    s_lshl_b32 s42, s40, 4
    s_mov_b32 s43, 0xffff0000
    v_lshlrev_b32 v2, 13, v0
    v_add_u32 v2, s42, v2
    v_subrev_u32 v1, 3072, v2
    v_add_u32 v3, 4096, v2
    s_waitcnt lgkmcnt(0)
    s_load_dwordx16 s[44:59], s[36:37], s41
    s_load_dwordx4 s[60:63], s[38:39], s42""")
    K, V, KV, Q = 16, 64, 96, 128
    for r in range(11):
        vo, im = (1, r) if r < 3 else ((2, r-3) if r < 7 else (3, r-7))
        a(f"buffer_load_dwordx4 {vr(K+4*r,4)}, v{vo}, s[12:15], 0 offen offset:{im*1024}")
    for base, sd in ((V, 16), (Q, 20)):
        for r in range(8): a(f"buffer_load_dwordx4 {vr(base+4*r,4)}, v{2+(r>>2)}, s[{sd}:{sd+3}], 0 offen offset:{(r&3)*1024}")
    a("""s_barrier
    v_mov_b32 v8, 0
    v_mov_b32 v9, 0
    v_mov_b32 v10, 0
    v_mov_b32 v11, 0
    v_lshlrev_b32 v4, 4, v0
    v_cmp_gt_u32 vcc, 160, v0
    s_and_saveexec_b64 s[64:65], vcc
    s_cbranch_execz L_cv_nz""")
    for c in range(8): a(f"ds_write_b128 v4, v[8:11] offset:{L_X + c*XCH}")
    a.label("L_cv_nz")
    a(f"""s_mov_b64 exec, s[64:65]
    v_lshrrev_b32 v4, 2, v0
    v_mul_u32_u24 v4, {XS}, v4
    v_and_b32 v5, 3, v0
    v_lshl_add_u32 v6, v5, 4, v4
    v_xor_b32 v5, 3, v5
    v_lshl_add_u32 v5, v5, 4, v4
    s_waitcnt lgkmcnt(0)""")
    for c in range(8):
        for j in range(2):
            a(f"s_lshl_b32 s{64+c*4+2*j}, s{44+c*2+j}, 16\ns_and_b32 s{65+c*4+2*j}, s{44+c*2+j}, s43")
    for p in range(4): a(f"s_lshl_b32 s{44+2*p}, s{60+p}, 16\ns_and_b32 s{45+2*p}, s{60+p}, s43")
    a("s_waitcnt vmcnt(8)")
    U, ACC, TM = 176, 200, 216
    def rnd(x): return f"v_cvt_pk_bf16_f32 v{x+1}, v{x}, v{x+1}\nv_lshlrev_b32 v{x}, 16, v{x+1}\nv_and_b32 v{x+1}, s43, v{x+1}"
    for p in range(4):
        for r in range(11): a(f"v_lshlrev_b32 v{U+2*r}, 16, v{K+4*r+p}\nv_and_b32 v{U+2*r+1}, s43, v{K+4*r+p}")
        for t in range(4):
            dst = ACC if t == 0 else TM
            for r in range(8):
                for ch in range(2): a(f"v_mul_f32 v{dst+2*r+ch}, s{64+(2*p+ch)*4+3-t}, v{U+2*(r+t)+ch}")
            for r in range(8): a(rnd(dst+2*r))
            if t:
                for i in range(16): a(f"v_add_f32 v{ACC+i}, v{ACC+i}, v{TM+i}")
                for r in range(8): a(rnd(ACC+2*r))
        for r in range(8): a(f"v_lshlrev_b32 v{TM+2*r}, 16, v{V+4*r+p}\nv_and_b32 v{TM+2*r+1}, s43, v{V+4*r+p}")
        for i in range(16): a(f"v_mul_f32 v{ACC+i}, v{ACC+i}, v{TM+i}")
        for ch in range(2):
            c = 2*p + ch
            for m in range(4): a(f"v_cvt_pk_bf16_f32 v{KV+4*c+m}, v{ACC+2*(7-2*m)+ch}, v{ACC+2*(6-2*m)+ch}")
            a(f"ds_write_b128 v5, {vr(KV+4*c,4)} offset:{L_X + c*XCH + 32*XS}")
    a(f"""v_and_b32 v1, 63, v0
    v_and_b32 v2, 31, v1
    v_lshrrev_b32 v3, 5, v1
    s_mul_i32 s52, s29, {4*KSTR}
    s_add_u32 s52, s52, {L_KC}
    v_lshlrev_b32 v7, 4, v1
    v_add_u32 v12, s52, v7
    v_add_u32 v8, 1, v2
    v_and_b32 v9, 3, v8
    v_mul_u32_u24 v9, {KSTR}, v9
    v_and_b32 v8, 60, v8
    v_lshl_add_u32 v9, v8, 1, v9
    v_lshl_add_u32 v9, v3, 4, v9
    v_add_u32 v13, s52, v9
    v_add_u32 v14, 2048, v13
    v_mul_u32_u24 v15, {XS}, v2
    s_mov_b32 s53, 0
    v_cmp_eq_u32 s[54:55], 3, v1
    s_waitcnt lgkmcnt(0)
    s_barrier""")
    a.label("L_cv_round")
    a(f"""s_add_u32 s56, s53, s29
    s_mul_i32 s57, s56, {XCH}
    s_add_u32 s57, s57, {L_X}
    s_lshl_b32 s58, s40, 3
    s_add_u32 s56, s56, s58
    s_lshl_b32 s56, s56, 12
    v_add_u32 v8, s56, v7""")
    R = 16
    for it in range(4):
        a(f"buffer_load_dwordx4 {vr(R+it*8,4)}, v8, s[32:35], 0 offen offset:{it*1024}")
        a(f"buffer_load_dwordx2 {vr(R+it*8+4,2)}, v8, s[32:35], 0 offen offset:{it*1024+16}")
    def copies(b, off):
        for i in range(5): a(f"v_alignbit_b32 v{56+i}, v{b+i+1}, v{b+i}, 16")
        for i in range(4): a(f"v_mov_b32 v{64+i}, v{b+1+i}\nv_mov_b32 v{68+i}, v{57+i}")
        for c, src in enumerate((b, 56, 64, 68)): a(f"ds_write_b128 v12, {vr(src,4)} offset:{c*KSTR + off}")
        a("s_waitcnt lgkmcnt(0)")
    a("s_waitcnt vmcnt(0)")
    a(f"v_readfirstlane_b32 s58, v{R}\nv_readfirstlane_b32 s59, v{R+1}")
    for it in range(4): copies(R+it*8, 64 + it*1024)
    for i in range(4): a(f"v_mov_b32 v{48+i}, 0")
    a("v_mov_b32 v52, s58\nv_mov_b32 v53, s59\nv_cndmask_b32 v52, 0, v52, s[54:55]\nv_cndmask_b32 v53, 0, v53, s[54:55]\ns_mov_b64 exec, 15")
    copies(48, 0)
    a(f"""s_mov_b64 exec, -1
    v_add_u32 v10, s57, v15
    v_lshl_add_u32 v11, v3, 4, v10
    v_subrev_u32 v11, {31*XS}, v11
    v_lshl_add_u32 v10, v3, 3, v10""")
    D0 = 176
    steps = [(d, kh) for d in range(64) for kh in range(2)]
    NB = 4
    def rd(i):
        d, kh = steps[i]; f = 2*d + kh; b = 16 + (i % NB)*12
        a(f"ds_read2_b64 {vr(b,4)}, v{13 + (f >= 64)} offset0:{4*(f%64)} offset1:{4*(f%64)+1}")
        for tl in ((0, 1) if d < 32 else (1,)):
            a(f"ds_read_b128 {vr(b+4+tl*4,4)}, v11 offset:{(63-d)*XS + tl*32*XS + kh*32}")
    cnt = lambda i: (3 if steps[i][0] < 32 else 2) if i < len(steps) else 0
    for i in range(NB-1): rd(i)
    for i, (d, kh) in enumerate(steps):
        if i + NB - 1 < len(steps): rd(i + NB - 1)
        a(f"s_waitcnt lgkmcnt({sum(cnt(i+k) for k in range(1, NB))})")
        b = 16 + (i % NB)*12
        for tl in ((0, 1) if d < 32 else (1,)):
            dd = vr(D0+16*tl, 16)
            a(f"v_mfma_f32_32x32x16_bf16 {dd}, {vr(b,4)}, {vr(b+4+tl*4,4)}, {'0' if i == 0 else dd}")
    a("s_nop 15")
    for tl in range(2):
        for q in range(4):
            b = D0+16*tl+4*q
            a(f"v_cvt_pk_bf16_f32 v{b}, v{b}, v{b+1}\nv_cvt_pk_bf16_f32 v{b+1}, v{b+2}, v{b+3}")
            a(f"ds_write_b64 v10, {vr(b,2)} offset:{(32+32*tl)*XS + q*16}")
    a("s_add_u32 s53, s53, 4\ns_cmp_lt_u32 s53, 8\ns_cbranch_scc1 L_cv_round\ns_waitcnt lgkmcnt(0)\ns_barrier")
    Y, OUT = 16, 64
    for c in range(8): a(f"ds_read_b128 {vr(Y+4*c,4)}, v6 offset:{L_X + c*XCH + 32*XS}")
    a(f"v_lshlrev_b32 v2, 14, v0\nv_add_u32 v2, s42, v2\ns_waitcnt lgkmcnt(0)")
    for p in range(4):
        for r in range(8):
            for ch in range(2):
                c = 2*p + ch
                kr = KV+4*c+(7-r)//2; yr = Y+4*c+r//2
                a(f"v_lshlrev_b32 v{TM+2*r+ch}, 16, v{kr}" if r % 2 else f"v_and_b32 v{TM+2*r+ch}, s43, v{kr}")
                a(f"v_and_b32 v{ACC+2*r+ch}, s43, v{yr}" if r % 2 else f"v_lshlrev_b32 v{ACC+2*r+ch}, 16, v{yr}")
                a(f"v_mul_f32 v{TM+2*r+ch}, s{44+c}, v{TM+2*r+ch}")
        for r in range(8): a(rnd(TM+2*r))
        for i in range(16): a(f"v_add_f32 v{ACC+i}, v{ACC+i}, v{TM+i}")
        for r in range(8): a(rnd(ACC+2*r))
        for r in range(8): a(f"v_lshlrev_b32 v{TM+2*r}, 16, v{Q+4*r+p}\nv_and_b32 v{TM+2*r+1}, s43, v{Q+4*r+p}")
        for i in range(16): a(f"v_mul_f32 v{ACC+i}, v{ACC+i}, v{TM+i}")
        for r in range(8): a(f"v_cvt_pk_bf16_f32 v{OUT+4*r+p}, v{ACC+2*r}, v{ACC+2*r+1}")
    for r in range(8):
        if r % 2 == 0 and r: a("v_add_u32 v2, 4096, v2")
        a(f"buffer_store_dwordx4 {vr(OUT+4*r,4)}, v2, s[24:27], 0 offen offset:{1024 + (r%2)*2048}")
    a("s_waitcnt vmcnt(0)\ns_endpgm")
```

```python
from common import *
D_RDY, D_PD, D_CP, D_OP, D_KV = 8, 9, 10, 18, 32
def lanes(a):
    a("v_and_b32 v1, 63, v0\nv_and_b32 v2, 15, v1\nv_lshrrev_b32 v3, 4, v1\nv_lshlrev_b32 v4, 4, v1")

def load_frags(a, srd_, voff, rowbytes, sbase, nks, dst, consts=0):
    def issue(b):
        for k2 in range(2):
            for j in range(8):
                a(f"s_add_u32 s63, s{sbase}, {((b*2+k2)*32 + j)*rowbytes}")
                a(f"buffer_load_dword v{16+(b%3)*16+k2*8+j}, v{voff}, s[{srd_}:{srd_+3}], s63 offen")
    def consume(b):
        for k2 in range(2):
            for t in range(2):
                for p in range(4):
                    s0 = 16+(b%3)*16+k2*8+2*p
                    k, r = dst((b*2+k2), t); r += p
                    if k == "v": a(f"v_perm_b32 v{r}, v{s0+1}, v{s0}, s{60+t}")
                    else: a(f"v_perm_b32 v{8+p}, v{s0+1}, v{s0}, s{60+t}\nv_accvgpr_write_b32 a{r}, v{8+p}")
    n = nks // 2
    a("s_mov_b32 s60, 0x05040100\ns_mov_b32 s61, 0x07060302")
    issue(0); issue(1)
    for b in range(n):
        if b + 2 < n: issue(b + 2)
        a(f"s_waitcnt vmcnt({16*min(2, n-1-b)})")
        consume(b)

def proj(a, done_label, flags=True):
    lanes(a)
    a("""s_and_b32 s41, s40, 1
    s_lshr_b32 s42, s40, 1
    s_and_b32 s42, s42, 31
    s_lshr_b32 s43, s40, 6
    s_add_u32 s44, s43, 1
    s_cmp_eq_u32 s44, 3
    s_cselect_b32 s44, 0, s44
    s_lshl_b32 s45, s44, 3
    s_add_u32 s45, s45, 16
    s_load_dwordx2 s[12:13], s[0:1], s45
    s_mov_b32 s14, 0x400000
    s_mov_b32 s15, 0x00020000""")
    srd(a, 16, "x")
    a("""v_lshlrev_b32 v5, 10, v2
    v_lshl_add_u32 v5, v3, 4, v5
    v_lshlrev_b32 v6, 16, v3
    v_lshl_add_u32 v6, v2, 2, v6
    s_lshl_b32 s46, s42, 8
    s_lshl_b32 s47, s29, 6
    s_add_u32 s46, s46, s47
    s_lshr_b32 s47, s29, 1
    s_lshl_b32 s47, s47, 14
    s_and_b32 s48, s29, 1
    s_lshl_b32 s48, s48, 9
    s_add_u32 s47, s47, s48
    s_lshl_b32 s48, s41, 15
    s_add_u32 s47, s47, s48
    s_lshl_b32 s49, s29, 13
    s_waitcnt lgkmcnt(0)""")
    def dma():
        for i in range(8):
            a(f"s_add_u32 m0, s49, {i*1024 - i*64}\ns_nop 0")
            a(f"buffer_load_dwordx4 v5, s[16:19], s47 offen offset:{i*64} lds")
        a("s_add_u32 s47, s47, 0x10000\ns_xor_b32 s49, s49, 0x8000")
    dma()
    load_frags(a, 12, 6, 8192, 46, 16, lambda ks, t: ("v", 128 + (ks*2+t)*4))
    a("""s_lshl_b32 s50, s44, 24
    s_lshl_b32 s48, s41, 18
    s_add_u32 s50, s50, s48
    s_lshl_b32 s48, s42, 13
    s_add_u32 s50, s50, s48
    s_mov_b32 s51, 0
    s_mov_b32 s52, 0
    s_lshl_b32 s53, s42, 2
    s_lshl_b32 s48, s43, 1
    s_add_u32 s53, s53, s48
    s_add_u32 s53, s53, s41
    s_cmp_eq_u32 s44, 2
    s_cbranch_scc1 L_pjV""")
    for var in ("K", "V"):
        if var == "V": a.label("L_pjV")
        a(f"s_lshl_b32 s48, s29, {10 if var == 'K' else 11}\ns_add_u32 s50, s50, s48")
        a.label(f"L_pj{var}_loop")
        a("s_waitcnt vmcnt(0)\ns_barrier")
        if flags:
            a(f"""s_cmp_lg_u32 s29, 0
            s_cbranch_scc1 L_pj{var}_nf
            s_cmp_eq_u32 s43, 2
            s_cbranch_scc1 L_pj{var}_nf
            s_mov_b64 exec, 1
            v_mov_b32 v8, s51
            buffer_store_byte v8, off, s[8:11], s53 offset:{D_KV*4} sc1
            s_mov_b64 exec, -1""")
            a.label(f"L_pj{var}_nf")
        a(f"s_cmp_eq_u32 s51, 32\ns_cbranch_scc1 L_pj_done\ns_cmp_eq_u32 s51, 31\ns_cbranch_scc1 L_pj{var}_nd")
        dma()
        a.label(f"L_pj{var}_nd")
        a("v_add_u32 v7, s52, v4\ns_xor_b32 s52, s52, 0x8000")
        def rd(c):
            for k in range(4):
                for T in range(2): a(f"ds_read_b128 {vr(16+(c&1)*32+(k*2+T)*4,4)}, v7 offset:{(T*16+c*4+k)*1024}")
        rd(0)
        for c in range(4):
            if c < 3: rd(c + 1)
            a(f"s_waitcnt lgkmcnt({8 if c < 3 else 0})")
            for k in range(4):
                ks = c*4 + k
                for T in range(2):
                    for t in range(2):
                        X = vr(16+(c&1)*32+(k*2+T)*4, 4); W = vr(128+(ks*2+t)*4, 4); D = vr(80+(T*2+t)*4, 4)
                        ops = f"{W}, {X}" if var == "K" else f"{X}, {W}"
                        a(f"v_mfma_f32_16x16x32_bf16 {D}, {ops}, {'0' if ks == 0 else D}")
        a("s_nop 7")
        if var == "K":
            for T in range(2):
                for i in range(4): a(f"v_cvt_pk_bf16_f32 v{96+T*4+i}, v{80+T*8+i}, v{84+T*8+i}")
            a("s_add_u32 s48, s50, 4096")
            a("buffer_store_dwordx4 v[96:99], v4, s[4:7], s50 offen sc1\nbuffer_store_dwordx4 v[100:103], v4, s[4:7], s48 offen sc1")
        else:
            for t in range(2):
                for T in range(2):
                    for i in range(2): a(f"v_cvt_pk_bf16_f32 v{96+t*4+T*2+i}, v{80+T*8+t*4+2*i}, v{81+T*8+t*4+2*i}")
            a("buffer_store_dwordx4 v[96:99], v4, s[4:7], s50 offen sc1\nbuffer_store_dwordx4 v[100:103], v4, s[4:7], s50 offen offset:1024 sc1")
        a(f"s_add_u32 s50, s50, 0x80000\ns_add_u32 s51, s51, 1\ns_branch L_pj{var}_loop")
    a.label("L_pj_done")
    a(f"""s_cmp_lg_u32 s29, 0
    s_cbranch_scc1 {done_label}
    s_mov_b64 exec, 1
    v_mov_b32 v8, 1
    buffer_atomic_add v8, off, s[8:11], 0 offset:{D_PD*4}
    s_mov_b64 exec, -1
    s_branch {done_label}""")
```

```python
import sys
from common import *
from chain import *
from proj import *
from attn import *
from conv import *
ts = eval(sys.argv[2]) if len(sys.argv) > 2 else False
a = Asm()
roles(a, "L_work", "L_exit")
def need(a_):
    return """s_and_b32 s96, s95, 1
    s_lshl_b32 s96, s96, 3
    s_lshr_b32 s97, s56, s96
    s_and_b32 s96, s97, 0xff
    s_bfe_u32 s97, s97, 0x80010
    s_min_u32 s96, s96, s97
    s_lshr_b32 s97, s95, 1
    s_cmp_gt_u32 s96, s97"""
def wait_proj(a, seg):
    a(f"s_mov_b32 s95, {seg}\ns_lshl_b32 s98, s28, 2\ns_mov_b32 s99, 0")
    poll(a, "L_ch_wp", f"buffer_load_dword v8, off, s[8:11], s98 offset:{D_KV*4} sc1", need(a), 1)
def wait_proj_loop(tag):
    return ["s_cmp_eq_u32 s99, 0", f"s_cbranch_scc1 L{tag}_wp", f"L{tag}_wpr:"]
def publish(a, tag): pass
def final(a, tag):
    a(f"""s_barrier
    s_cmp_lg_u32 s29, 0
    s_cbranch_scc1 L{tag}_fin
    s_mov_b64 exec, 1
    v_mov_b32 v8, 64
    buffer_store_byte v8, off, s[8:11], s28 offset:{D_CP*4} sc1
    s_waitcnt vmcnt(0)""")
    a.label(f"L{tag}_fin")
    a("s_endpgm")
    a.label(f"L{tag}_wp")
    a("s_add_u32 s95, s64, 1\ns_min_u32 s95, s95, 63")
    a(f"s_mov_b32 s57, {SPINW}")
    a.label(f"L{tag}_wp2")
    a(f"buffer_load_dword v116, off, s[8:11], s98 offset:{D_KV*4} sc1\ns_waitcnt vmcnt(0)\nv_readfirstlane_b32 s56, v116")
    a("s_cmp_eq_u32 s56, 0x20202020\ns_cselect_b32 s99, 1, 0")
    a(need(a))
    a(f"s_cbranch_scc1 L{tag}_wpr\ns_sub_u32 s57, s57, 1\ns_cbranch_scc0 L{tag}_wp2\ns_branch L{tag}_wpr")
def flag(tag):
    return ["s_cmp_lg_u32 s29, 0", f"s_cbranch_scc1 L{tag}_nfl", "s_mov_b64 exec, 1", f"buffer_store_byte v117, off, s[8:11], s28 offset:{D_CP*4} sc1", "s_mov_b64 exec, -1", f"L{tag}_nfl:"]
chain(a, ts=ts, merged=dict(wait_proj=wait_proj, wait_proj_loop=wait_proj_loop, publish=publish, final=final, flag=flag))
a.label("L_work")
a("s_sub_u32 s40, s30, 32\ns_cmp_ge_u32 s40, 192\ns_cbranch_scc1 L_second")
proj(a, "L_second")
a.label("L_second")
a("""s_sub_u32 s40, s30, 32
s_cmp_lt_u32 s40, 64
s_cbranch_scc1 L_oproj
s_sub_u32 s40, s40, 64
s_cmp_lt_u32 s40, 32
s_cbranch_scc1 L_attn
s_cmp_lt_u32 s40, 96
s_cbranch_scc1 L_exit
s_sub_u32 s40, s40, 96""")
conv(a)
a.label("L_oproj"); oproj(a)
a.label("L_attn"); attn(a)
a.label("L_exit"); a("s_endpgm")
for p in check(a.lines, "k"): print(p)
K = NAME + "_kernel"
txt = header(["; @launch grid=(256,1,1) block=(256,1,1) lds=163840"]) + kernel_text(K, a.text()) + '.section .rodata,"a"\n' + descriptor(K)
open(sys.argv[1], "w").write(txt)
print(len(txt), "bytes", len(a.lines), "lines")
```

```python
from common import *
from proj import *
from chain import f32
def attn(a, flags=True):
    lanes(a)
    a(f"""s_lshr_b32 s41, s40, 3
    s_and_b32 s42, s40, 7
    s_lshl_b32 s43, s42, 2
    s_add_u32 s43, s43, s29
    s_mov_b32 s44, s41
    s_lshl_b32 s50, s43, 7
    s_add_u32 s50, s50, {hex(WS_FL)}
    s_lshr_b32 s51, s40, 1
    s_lshl_b32 s51, s51, 7
    s_and_b32 s48, s40, 1
    s_add_u32 s51, s51, s48
    s_add_u32 s51, s51, {hex(WS_FL+0x2000)}
    s_mov_b32 s58, {f32(0.08838834764831845)}
    s_mov_b32 s59, {f32(1.4426950408889634)}
    s_mov_b32 s62, 0xffff0000
    v_lshlrev_b32 v5, 2, v3
    v_mov_b32 v7, 0xce6e6b28""")
    for i in range(4): a(f"v_add_u32 v6, {i}, v5\nv_cmp_le_u32 s[{64+2*i}:{65+2*i}], v6, v2")
    if flags: poll(a, "L_at_pd", f"buffer_load_dword v8, off, s[8:11], 0 offset:{D_PD*4} sc1", "s_cmp_ge_u32 s56, 192", 8)
    a.label("L_at_loop")
    Q, K, KM, V, VM = 16, 48, 80, 96, 128
    a(f"""s_lshl_b32 s45, s44, 5
    s_add_u32 s45, s45, s43
    s_lshl_b32 s46, s45, 13
    s_lshl_b32 s47, s45, 12""")
    for base, ws in ((Q, WS_QX), (K, WS_KX), (V, WS_VX)):
        for hh in range(2):
            a(f"s_add_u32 s48, s46, {hex(ws + hh*4096)}")
            for i in range(4): a(f"buffer_load_dwordx4 {vr(base+hh*16+i*4,4)}, v4, s[4:7], s48 offen offset:{i*1024} sc1")
    if flags: poll(a, "L_at_cp", f"buffer_load_ubyte v8, off, s[4:7], s50 sc1", "s_cmp_gt_u32 s56, s44", 1)
    for base, ws in ((KM, WS_KM), (VM, WS_VM)):
        a(f"s_add_u32 s48, s47, {hex(ws)}")
        for i in range(4): a(f"buffer_load_dwordx4 {vr(base+i*4,4)}, v4, s[4:7], s48 offen offset:{i*1024} sc1")
    S = 144
    def sreg(Tq, tl): return S + (Tq*3+tl)*4
    a("s_waitcnt vmcnt(8)")
    for ks in range(4):
        for Tq, tl in ((0, 0), (1, 0), (1, 1)):
            d = vr(sreg(Tq, tl), 4)
            a(f"v_mfma_f32_16x16x32_bf16 {d}, {vr(K+tl*16+ks*4,4)}, {vr(Q+Tq*16+ks*4,4)}, {'0' if ks == 0 else d}")
    a("s_waitcnt vmcnt(4)")
    for ks in range(4):
        for Tq in range(2):
            d = vr(sreg(Tq, 2), 4)
            a(f"v_mfma_f32_16x16x32_bf16 {d}, {vr(KM+ks*4,4)}, {vr(Q+Tq*16+ks*4,4)}, {'0' if ks == 0 else d}")
    a("s_nop 7")
    P = 168
    for Tq in range(2):
        tiles = (0, 2) if Tq == 0 else (0, 1, 2)
        rr = [sreg(Tq, tl) + i for tl in tiles for i in range(4)]
        def rnd():
            for x in rr[::2]: a(f"v_cvt_pk_bf16_f32 v{x+1}, v{x}, v{x+1}\nv_lshlrev_b32 v{x}, 16, v{x+1}\nv_and_b32 v{x+1}, s62, v{x+1}")
        rnd()
        for x in rr: a(f"v_mul_f32 v{x}, s58, v{x}")
        rnd()
        for i in range(4): a(f"v_cndmask_b32 v{sreg(Tq,Tq)+i}, v7, v{sreg(Tq,Tq)+i}, s[{64+2*i}:{65+2*i}]")
        a(f"v_max_f32 v9, v{rr[0]}, v{rr[1]}")
        for x in rr[2::2]: a(f"v_max3_f32 v9, v9, v{x}, v{x+1}")
        def xl(op):
            for sw in (16, 32): a(f"v_mov_b32 v10, v9\ns_nop 1\nv_permlane{sw}_swap_b32 v9, v10\ns_nop 1\n{op} v9, v9, v10")
        xl("v_max_f32")
        for x in rr: a(f"v_sub_f32 v{x}, v{x}, v9")
        for x in rr: a(f"v_mul_f32 v{x}, s59, v{x}")
        for x in rr: a(f"v_exp_f32 v{x}, v{x}")
        m = rr[-4:]
        a(f"v_add_f32 v9, v{m[0]}, v{m[1]}\nv_add_f32 v9, v9, v{m[2]}\nv_add_f32 v9, v9, v{m[3]}\nv_mul_f32 v9, 0.5, v9")
        for x in rr[:-4]: a(f"v_add_f32 v9, v9, v{x}")
        xl("v_add_f32")
        a("v_rcp_f32 v9, v9\ns_nop 0")
        for x in rr: a(f"v_mul_f32 v{x}, v{x}, v9")
        for tl in range(3):
            for i in range(2):
                d = P + Tq*8 + tl*2 + i
                if tl in tiles: a(f"v_cvt_pk_bf16_f32 v{d}, v{sreg(Tq,tl)+2*i}, v{sreg(Tq,tl)+2*i+1}")
                else: a(f"v_mov_b32 v{d}, 0")
    a(f"""s_lshl_b32 s48, s44, 18
    s_lshl_b32 s49, s43, 12
    s_add_u32 s48, s48, s49
    s_add_u32 s48, s48, {hex(WS_O)}
    s_add_u32 s49, s48, 0x20000
    s_waitcnt vmcnt(0)""")
    O = 184
    for Tq in range(2):
        for e in range(8): a(f"v_mfma_f32_16x16x32_bf16 {vr(O+Tq*32+e*4,4)}, {vr(V+e*4,4)}, {vr(P+Tq*8,4)}, 0")
        for e in range(8): a(f"v_mfma_f32_16x16x16_bf16 {vr(O+Tq*32+e*4,4)}, {vr(VM+e*2,2)}, {vr(P+Tq*8+4,2)}, {vr(O+Tq*32+e*4,4)}")
    a("s_nop 7")
    for Tq in range(2):
        for w in range(4):
            b = O+Tq*32+w*8
            for i in range(4): a(f"v_cvt_pk_bf16_f32 v{b+i}, v{b+i}, v{b+4+i}")
            a(f"buffer_store_dwordx4 {vr(b,4)}, v4, s[4:7], s{48+Tq} offen offset:{w*1024} sc1")
    a("s_add_u32 s44, s44, 4\ns_waitcnt vmcnt(0)")
    if flags:
        a(f"""s_barrier
        s_cmp_lg_u32 s29, 0
        s_cbranch_scc1 L_at_nf
        s_lshr_b32 s48, s44, 2
        s_mov_b64 exec, 1
        v_mov_b32 v8, s48
        buffer_store_byte v8, off, s[4:7], s51 sc1
        s_mov_b64 exec, -1""")
        a.label("L_at_nf")
    a("s_cmp_lt_u32 s44, 64\ns_cbranch_scc1 L_at_loop\ns_waitcnt vmcnt(0)\ns_endpgm")

def oproj(a, flags=True):
    lanes(a)
    srd(a, 12, "Wo"); srd(a, 16, "out")
    a("""s_lshr_b32 s44, s40, 4
    s_and_b32 s42, s40, 15
    v_lshlrev_b32 v6, 13, v3
    v_lshl_add_u32 v6, v2, 2, v6
    s_lshl_b32 s46, s29, 20
    s_lshl_b32 s47, s42, 6
    s_add_u32 s46, s46, s47
    v_lshlrev_b32 v5, 11, v2
    v_lshl_add_u32 v5, v3, 4, v5
    v_add_u32 v5, s47, v5
    s_waitcnt lgkmcnt(0)""")
    load_frags(a, 12, 6, 1024, 46, 32, lambda ks, t: ("a", (ks*2+t)*4))
    a("s_lshl_b32 s50, s29, 11\ns_mov_b32 s51, 0\ns_barrier")
    a.label("L_op_loop")
    a(f"""s_lshr_b32 s45, s44, 1
    s_and_b32 s48, s45, 3
    s_lshl_b32 s48, s48, 2
    s_add_u32 s48, s48, s29
    s_lshl_b32 s48, s48, 7
    s_add_u32 s48, s48, {hex(WS_FL+0x2000)}
    s_lshr_b32 s49, s45, 2""")
    if flags: poll(a, "L_op_w", f"buffer_load_ushort v8, off, s[4:7], s48 sc1",
                   "s_and_b32 s58, s56, 0xff\ns_lshr_b32 s56, s56, 8\ns_min_u32 s56, s56, s58\ns_cmp_gt_u32 s56, s49", 1)
    a(f"s_lshl_b32 s48, s44, 17\ns_lshl_b32 s49, s29, 15\ns_add_u32 s48, s48, s49\ns_add_u32 s48, s48, {hex(WS_O)}")
    for i in range(32):
        if i % 4 == 0 and i: a("s_add_u32 s48, s48, 4096")
        a(f"buffer_load_dwordx4 {vr(128+i*4,4)}, v4, s[4:7], s48 offen offset:{(i%4)*1024} sc1")
    for ks in range(32):
        a(f"s_waitcnt vmcnt({31-ks})")
        for t in range(2):
            d = vr(16+t*4, 4)
            a(f"v_mfma_f32_16x16x32_bf16 {d}, {ar((ks*2+t)*4,4)}, {vr(128+ks*4,4)}, {'0' if ks == 0 else d}")
    a("""v_add_u32 v7, s51, v4
    v_add_u32 v9, s50, v7
    s_xor_b32 s51, s51, 0x2000
    s_nop 5
    ds_write_b128 v9, v[16:19]
    ds_write_b128 v9, v[20:23] offset:1024
    s_waitcnt lgkmcnt(0)
    s_barrier
    s_cmp_lg_u32 s29, 0
    s_cbranch_scc1 L_op_next""")
    for w in range(1, 4):
        for t in range(2): a(f"ds_read_b128 {vr(16+w*8+t*4,4)}, v7 offset:{w*2048+t*1024}")
    a("s_waitcnt lgkmcnt(0)")
    for w in range(1, 4):
        for i in range(8): a(f"v_add_f32 v{16+i}, v{16+i}, v{16+w*8+i}")
    for i in range(4): a(f"v_cvt_pk_bf16_f32 v{48+i}, v{16+i}, v{20+i}")
    a("s_lshl_b32 s48, s44, 15\nbuffer_store_dwordx4 v[48:51], v5, s[16:19], s48 offen")
    a.label("L_op_next")
    a("s_add_u32 s44, s44, 4\ns_cmp_lt_u32 s44, 128\ns_cbranch_scc1 L_op_loop\ns_waitcnt vmcnt(0)\ns_endpgm")
```

```python
from common import *
L_KX, L_MEM, L_Q, L_W = 0, 16384, 24576, 32768
L_O = L_MEM
QSTR, KOFF, QX4 = 576, 256, 4128
LDS_CHAIN = 163840
SPIN = 20000
import os, re
PB1, PB2, PB3, PB4, PS, PW = eval(os.environ.get('PB', '(4, 35, 47, 2, (1,2,3,3,4,7,8), 41)'))
PV1, PD1, PD4, PV2, PD2, PD3 = eval(os.environ.get('PRM', '(0, 49, 0, 2, 2, 2)'))
CEXP = 0.08838834764831845 * 1.4426950408889634
import struct
def f32(x): return hex(struct.unpack("<I", struct.pack("<f", x))[0])

def roles(a, nchain_label, exit_label):
    a(f"""s_cmp_ge_u32 s2, 256
    s_cbranch_scc1 {exit_label}""")
    srd(a, 4, "ws"); srd(a, 8, "dbg")
    a("""s_getreg_b32 s31, hwreg(HW_REG_XCC_ID)
    s_and_b32 s31, s31, 7
    v_readfirstlane_b32 s29, v0
    s_lshr_b32 s29, s29, 6
    s_waitcnt lgkmcnt(0)
    s_cmp_lg_u32 s29, 0
    s_cbranch_scc1 L_role_wait
    s_mov_b64 exec, 1
    s_mov_b32 s32, 0
    v_mov_b32 v3, 0""")
    a.label("L_role_try")
    a("""s_add_u32 s33, s31, s32
    s_and_b32 s33, s33, 7
    s_lshl_b32 s34, s33, 2
    v_mov_b32 v1, 1
    buffer_atomic_add v1, off, s[8:11], s34 sc0
    s_waitcnt vmcnt(0)
    v_readfirstlane_b32 s35, v1
    s_cmp_lt_u32 s35, 32
    s_cbranch_scc1 L_role_got
    s_add_u32 s32, s32, 1
    s_cmp_lt_u32 s32, 8
    s_cbranch_scc1 L_role_try
    s_mov_b32 s33, 8
    s_mov_b32 s35, 0""")
    a.label("L_role_got")
    a("""s_lshl_b32 s33, s33, 5
    s_add_u32 s33, s33, s35
    s_lshl_b32 s32, s32, 16
    s_or_b32 s33, s33, s32
    v_mov_b32 v1, s33
    ds_write_b32 v3, v1
    s_mov_b64 exec, -1
    s_waitcnt lgkmcnt(0)""")
    a.label("L_role_wait")
    a(f"""s_barrier
    v_mov_b32 v3, 0
    ds_read_b32 v1, v3
    s_waitcnt lgkmcnt(0)
    v_readfirstlane_b32 s30, v1
    s_barrier
    s_lshr_b32 s36, s30, 16
    s_and_b32 s30, s30, 0xffff
    s_cmp_ge_u32 s30, 256
    s_cbranch_scc1 {exit_label}
    s_cmp_ge_u32 s30, 32
    s_cbranch_scc1 {nchain_label}""")

A0, AQ, AK, AV, KXR, QF, VX, SX = 0, 32, 40, 48, 56, 88, 104, 112
IDX, L16, WOB, QKW, QKR, INS, OX, MST = 120, 121, 122, 123, 124, 125, 126, 127
INL = 25
SEQ = [(m, sg, t) for m in (0, 1, 2) for sg in (0, 1) for t in (0, 1)] + [(m, sg, t) for m in (0, 1, 2) for sg in range(2, 8) for t in (0, 1)]
RING = {0: (8, None), 1: (16, None), 2: (QF, None), 3: (QF+8, None), 16: (QF, 8), 18: (QF+8, 10), 20: (SX, 12), 24: (QF, 16), 26: (QF+8, 18),
        28: (SX, 20), 32: (QF, 24), 34: (QF+8, 26), 36: (SX, 28)}
WRING = {0: (8, 40), 1: (KXR+8, 50), 2: (KXR+24, 52)}
LOC = {}; STG = {}
_l = 0; _r = 0
for i, k in list(enumerate(SEQ)) + [(100+op, (3, op >> 1, op & 1)) for op in range(16)]:
    rg = RING.get(i) if i < 100 else WRING.get(i - 100)
    if rg: LOC[k] = ('l', _l); STG[k] = rg; _l += 1
    else: LOC[k] = ('a', _r*8) if _r < 32 else ('v', 128 + (_r-32)*8); _r += 1
assert _l == 16 and _r == 48
def wreg(k):
    c, r = LOC[k]
    return vr(STG[k][0], 8) if c == 'l' else vr(r, 8, c)
def wrd(k): return [f"ds_read_b128 {vr(STG[k][0]+4*i,4)}, v{WOB} offset:{LOC[k][1]*2048+i*1024}" for i in (0, 1)]

def dma():
    o = [f"buffer_load_dwordx4 v{L16}, s[4:7], s{65+(i>>1)} offen offset:{i*1024} sc1 lds" for i in range(4)]
    return o + [f"s_add_u32 s{sg}, s{sg}, {32*8192}" for sg in (65, 66)]

def chain(a, ts=False, merged=False, nsteps=64):
    a("s_mov_b32 s28, s30")
    if ts and 'rt' in ts: a("s_memrealtime s[80:81]")
    srd(a, 12, "Wq"); srd(a, 16, "Wk"); srd(a, 20, "Wv"); srd(a, 24, "Wo"); srd(a, 40, "mem0")
    a(f"""v_and_b32 v1, 63, v0
    v_lshlrev_b32 v{L16}, 4, v1
    v_and_b32 v2, 15, v1
    v_lshrrev_b32 v3, 4, v1
    s_lshl_b32 s37, s29, 15
    s_add_u32 s37, s37, {L_W}
    v_add_u32 v{WOB}, s37, v{L16}
    v_mov_b32 v4, 0x4444
    v_mov_b32 v5, 0xeeee
    v_and_b32 v6, 2, v2
    v_cmp_eq_u32 vcc, 0, v6
    s_nop 1
    v_cndmask_b32 v{IDX}, v5, v4, vcc""")
    a(f"""v_and_b32 v4, 1, v3
    v_mul_u32_u24 v4, {2*QSTR}, v4
    v_lshl_add_u32 v4, v2, 2, v4
    v_lshrrev_b32 v5, 1, v3
    v_mul_u32_u24 v5, {QX4}, v5
    v_xor_b32 v4, v4, v5
    s_lshl_b32 s37, s29, 6
    s_add_u32 s37, s37, {L_Q}
    v_add_u32 v{QKW}, s37, v4""")
    a(f"""v_lshrrev_b32 v4, 2, v2
    v_and_b32 v5, 1, v2
    v_lshl_add_u32 v12, v4, 1, v5
    v_and_b32 v4, 3, v12
    v_mul_u32_u24 v4, {QSTR}, v4
    v_lshl_add_u32 v4, v3, 4, v4
    v_lshrrev_b32 v5, 2, v12
    v_mul_u32_u24 v5, {QX4}, v5
    v_xor_b32 v4, v4, v5
    v_add_u32 v{QKR}, {L_Q}, v4""")
    a(f"""v_lshrrev_b32 v5, 2, v2
    v_lshl_add_u32 v4, v5, 2, v3
    v_lshlrev_b32 v4, 11, v4
    v_and_b32 v5, 3, v2
    v_lshl_add_u32 v4, v5, 4, v4
    s_lshl_b32 s37, s29, 16
    s_lshl_b32 s38, s28, 6
    s_add_u32 s37, s37, s38
    v_add_u32 v{INS}, s37, v4""")
    a(f"""v_lshl_add_u32 v4, v3, 2, v5
    v_lshlrev_b32 v4, 6, v4
    v_lshrrev_b32 v5, 2, v2
    v_lshl_add_u32 v4, v5, 4, v4
    s_lshl_b32 s37, s28, 2
    s_add_u32 s37, s37, s29
    s_lshl_b32 s38, s37, 11
    s_mov_b32 s74, s38
    v_add_u32 v{INL}, s38, v4""")
    a(f"""v_lshlrev_b32 v4, 4, v2
    v_lshl_add_u32 v4, v3, 2, v4
    s_lshl_b32 s100, s37, 6
    v_add_u32 v{MST}, s100, v4""")
    a("v_cmp_gt_u32 s[44:45], 4, v2")
    a("v_and_b32 v4, 7, v2\nv_lshrrev_b32 v4, 1, v4")
    for i in range(4): a(f"v_cmp_eq_u32 s[{46+2*i}:{47+2*i}], {i}, v4")
    a("v_and_b32 v4, 1, v2\nv_cmp_eq_u32 s[54:55], 1, v4")
    a("v_mov_b32 v8, -1\nv_mov_b32 v9, -1\nv_mov_b32 v10, -1\nv_mov_b32 v11, -1")
    a(f"s_mov_b32 s56, {hex(WS_INBOX)}\ns_mov_b32 s57, {hex(WS_INBOX+0x40000)}\ns_waitcnt lgkmcnt(0)")
    for sl in (56, 57):
        for o in (0, 1024): a(f"buffer_store_dwordx4 v[8:11], v{INL}, s[4:7], s{sl} offen offset:{o} sc1")
    a("s_mov_b64 exec, s[44:45]")
    for sl in range(4):
        a(f"s_mov_b32 s58, {hex(WS_MEMF + sl*8192)}\nbuffer_store_dword v8, v{MST}, s[4:7], s58 offen sc1")
    a(f"s_mov_b64 exec, 1\nv_mov_b32 v9, 0\ns_lshl_b32 s98, s28, 7\ns_add_u32 s98, s98, {hex(WS_FL)}")
    for i in range(3): a(f"s_add_u32 s58, s98, {i*0x1000}\nbuffer_store_dword v9, off, s[4:7], s58 sc1")
    a("s_add_u32 s95, s98, 0x1000\ns_mov_b64 exec, -1\ns_waitcnt vmcnt(0)\ns_barrier")
    a("""s_cmp_lg_u32 s29, 0
    s_cbranch_scc1 L_ch_noinc
    s_cmp_lg_u32 s36, 0
    s_cselect_b32 s58, 0x10001, 1
    s_mov_b64 exec, 1
    v_mov_b32 v8, s58
    buffer_atomic_add v8, off, s[8:11], 0 offset:32
    s_mov_b64 exec, -1""")
    a.label("L_ch_noinc")
    a("""v_lshrrev_b32 v4, 1, v3
    v_and_b32 v5, 1, v3
    v_lshlrev_b32 v6, 4, v4
    v_lshl_add_u32 v6, v5, 2, v6
    v_lshlrev_b32 v6, 13, v6
    v_lshl_add_u32 v6, v2, 2, v6
    s_lshl_b32 s37, s28, 8
    s_lshl_b32 s38, s29, 6
    s_add_u32 s37, s37, s38
    v_add_u32 v6, s37, v6
    v_lshlrev_b32 v7, 3, v4
    v_lshl_add_u32 v7, v5, 2, v7
    v_lshlrev_b32 v7, 10, v7
    v_lshl_add_u32 v7, v2, 2, v7
    v_and_b32 v4, 12, v2
    v_lshl_add_u32 v7, v4, 2, v7
    s_lshl_b32 s37, s28, 17
    s_lshl_b32 s38, s29, 8
    s_add_u32 s37, s37, s38
    v_add_u32 v7, s37, v7
    s_mov_b32 s60, 0x05040100
    s_mov_b32 s61, 0x07060302
    s_lshl_b32 s59, s29, 1""")
    batches = [(m, sg) for m in range(3) for sg in range(8)] + [(3, i) for i in range(8)]
    def issue(bi):
        m, sg = batches[bi]; base = 16 + (bi % 3) * 16
        if m < 3:
            a(f"s_xor_b32 s62, s59, {sg}\ns_lshl_b32 s62, s62, 19")
            for rho in range(8):
                for b in range(2):
                    row = 32*(rho >> 2) + 8*(rho & 1) + 2*((rho >> 1) & 1) + b
                    a(f"s_add_u32 s63, s62, {row*8192}")
                    a(f"buffer_load_dword v{base+2*rho+b}, v6, s[{12+4*m}:{15+4*m}], s63 offen")
        else:
            u, ks = sg & 1, sg >> 1
            a(f"s_xor_b32 s62, s29, {ks}\ns_lshl_b32 s62, s62, 15")
            for rho in range(8):
                for b in range(2):
                    row = 16*(rho >> 2) + 2*((rho >> 1) & 1) + b
                    a(f"s_add_u32 s63, s62, {row*1024 + u*128 + (rho & 1)*16}")
                    a(f"buffer_load_dword v{base+2*rho+b}, v7, s[24:27], s63 offen")
    def consume(bi):
        m, sg = batches[bi]; base = 16 + (bi % 3) * 16
        for t in range(2):
            k, r = LOC[(m, sg, t)]
            for rho in range(8):
                a(f"v_perm_b32 v{r+rho if k == 'v' else 64+t*8+rho}, v{base+2*rho+1}, v{base+2*rho}, s{60+t}")
            if k == 'a':
                for i in range(8): a(f"v_accvgpr_write_b32 a{r+i}, v{64+t*8+i}")
            if k == 'l':
                for i in range(2): a(f"ds_write_b128 v{WOB}, {vr(64+t*8+4*i,4)} offset:{r*2048 + i*1024}")
                a("s_waitcnt lgkmcnt(0)")
    n = len(batches)
    issue(0); issue(1)
    for bi in range(n):
        if bi + 2 < n: issue(bi + 2)
        a(f"s_waitcnt vmcnt({16*min(2, n-1-bi)})")
        consume(bi)
    if ts and 'rt' in ts: a("s_memrealtime s[82:83]")
    a(f"""s_lshl_b32 s37, s28, 13
    s_lshl_b32 s38, s29, 11
    s_add_u32 s37, s37, s38
    s_add_u32 s65, s37, {hex(WS_KX)}
    s_add_u32 s66, s37, {hex(WS_VX-2048)}
    s_lshr_b32 s37, s37, 1
    s_add_u32 s67, s37, {hex(WS_KM)}
    s_add_u32 s68, s37, {hex(WS_VM)}
    s_lshl_b32 s73, s38, 1
    s_mov_b32 m0, s73
    s_mov_b32 s64, 0
    s_mov_b32 s72, {hex(WS_INBOX)}""")
    if merged: merged["wait_proj"](a, 1)
    a(f"s_sub_u32 s67, s67, {32*4096}\ns_sub_u32 s68, s68, {32*4096}")
    for x in dma(): a(x)
    a("""v_lshlrev_b32 v4, 10, v12
    v_lshl_add_u32 v4, v3, 5, v4
    v_and_b32 v5, 2, v2
    v_cmp_ne_u32 s[12:13], 0, v5
    v_lshl_add_u32 v4, v5, 3, v4
    s_lshl_b32 s37, s29, 8
    buffer_load_dwordx4 v[8:11], v4, s[40:43], s37 offen
    buffer_load_dwordx4 v[12:15], v4, s[40:43], s37 offen offset:128""")
    a(f"s_mov_b32 s75, {SPIN*10}")
    a.label("L_ch_rdy")
    a("""buffer_load_dword v16, off, s[8:11], 0 offset:32 sc1
    s_waitcnt vmcnt(0)
    v_readfirstlane_b32 s37, v16
    s_and_b32 s38, s37, 0xffff
    s_sub_u32 s75, s75, 1
    s_cselect_b32 s38, 32, s38
    s_cmp_lt_u32 s38, 32
    s_cbranch_scc1 L_ch_rdy
    s_barrier""")
    if ts and 'rt' in ts: a("s_memrealtime s[84:85]")
    for i in range(8): a(f"v_mov_b32 v{i}, v{8+i}")
    a(f"s_lshl_b32 s76, s29, 11\ns_add_u32 s77, s76, {L_MEM}\ns_mov_b32 s78, {f32(CEXP)}\ns_lshl_b32 s79, s29, 6")
    a(f"s_lshl_b32 s38, s29, 10\ns_add_u32 s38, s38, {L_O}\nv_and_b32 v{OX}, 0x3df, v{L16}\nv_add_u32 v{OX}, s38, v{OX}\ns_not_b64 s[14:15], s[12:13]\ns_mov_b32 s101, 0\ns_mov_b32 s39, 0")
    a("s_lshr_b32 s37, s37, 16\ns_cmp_lg_u32 s37, 0\ns_cbranch_scc1 L_slow_entry")
    loop(a, "f", "", ts, merged, nsteps)
    a.label("L_slow_entry")
    loop(a, "s", " sc1", False, merged, nsteps)


def TSR(i): return 80+2*i if i < 7 else 16
class Em:
    def __init__(s, a): s.a = a; s.pend = []
    def need(s, lns):
        k = None
        for ln in lns:
            if ln.endswith(":"): continue
            c = classify(ln); use = c["r"] | c["w"]
            for i, w in enumerate(s.pend):
                if w & use: k = min(k, len(s.pend)-1-i) if k is not None else len(s.pend)-1-i
        if k is not None: s.raw(f"s_waitcnt lgkmcnt({min(k, 15)})")
    def raw(s, ln):
        s.a(ln)
        m = re.search(r"lgkmcnt\((\d+)\)", ln)
        if m: n = int(m.group(1)); s.pend = s.pend[len(s.pend)-n:] if n else []
        if ln.startswith("ds_"): s.pend.append(classify(ln)["w"])
    def __call__(s, txt):
        for ln in txt.split("\n"):
            ln = ln.strip()
            if ln: s.need([ln]); s.raw(ln)
    def gaps(s, main, X, V, T={}):
        for i, m in enumerate(main):
            s(m)
            for x in X.get(i, []): s(x)
            s.need(V.get(i, []) + main[i+1:i+2])
            for x in V.get(i, []): s(x)
            if i in T: T[i]()

def loop(a, tag, sc, ts, merged, nsteps):
    def T(i):
        if ts and i in ts: a(f"s_memtime s[{TSR(i)}:{TSR(i)+1}]" if 'w' not in ts else f"s_memrealtime s[{TSR(i)}:{TSR(i)+1}]")
        if ts and i == 7 and 'rt' in ts: a("s_memrealtime s[92:93]")
    e = Em(a)
    MB = 28
    def kmrd(): return [f"v_add_u32 v24, s79, v{QKR}", f"ds_read_b128 {vr(SX,4)}, v24 offset:{KOFF}"]
    def preA():
        o = [f"v_add_u32 v{MB}, s77, v{L16}", f"v_add_u32 v26, s73, v{L16}"] + kmrd()
        o += [f"ds_read_b128 {vr(KXR+4*i,4)}, v{L16} offset:{(i>>1)*4096+(i&1)*1024}" for i in range(8)]
        o += [f"ds_read_b128 {vr(VX+4*t,4)}, v26 offset:{2048+t*1024}" for t in range(2)]
        for g in range(4): o += wrd(SEQ[g])
        for i in range(4): o.append(f"v_mov_b32 v{SX+4+i}, v{AV+i}")
        for i in range(8): o.append(f"v_mov_b32 v{AV+i}, 0")
        for j in (1, 2, 3): o.append(f"v_xor_b32 v{MB+j}, {j*2048}, v{MB}")
        return o + ["v_mov_b32 v27, s101", "s_waitcnt lgkmcnt(0)", "s_barrier"]
    def preB(chk=True): return [f"v_mov_b32 v{AQ+i}, 0" for i in range(16)] + (merged["wait_proj_loop"](tag) if merged and chk else [])
    def add(d, g, l): d.setdefault(g, []).extend(l)
    for x in preA() + preB(False): a(x)
    a(f"s_branch L{tag}_body")
    a.label(f"L{tag}_p2")
    a(f"""s_mov_b64 exec, s[58:59]
    buffer_load_dwordx4 v[0:3], v{L16}, s[4:7], s69 offen sc1
    s_mov_b64 exec, s[62:63]
    buffer_load_dwordx4 v[4:7], v{L16}, s[4:7], s69 offen offset:1024 sc1
    s_mov_b64 exec, -1
    s_sub_u32 s75, s75, 1
    s_cselect_b64 s[56:57], 0, -1
    s_waitcnt vmcnt({PV2})
    v_cmp_eq_u32 s[58:59], -1, v0
    v_cmp_eq_u32 s[62:63], -1, v4
    s_or_b64 vcc, s[58:59], s[62:63]
    s_and_b64 vcc, vcc, s[56:57]
    s_cbranch_vccnz L{tag}_p2""")
    a.label(f"L{tag}_body")
    T(0)
    def sm(k):
        mat, sg, t = k; acc = (AQ, AK, AV)[mat] + 4*t
        return f"v_smfmac_f32_16x16x64_bf16 {vr(acc,4)}, {vr(A0+4*sg,4)}, {wreg(k)}, v{IDX}"
    def mf(d, x, y, c): return f"v_mfma_f32_16x16x32_bf16 {vr(d,4)}, {vr(x,4)}, {vr(y,4)}, {c}"
    def mf16(d, x, y, c): return f"v_mfma_f32_16x16x16_bf16 {vr(d,4)}, {vr(x,2)}, {vr(y,2)}, {c}"
    KF = [KXR, KXR+4, KXR+16, KXR+20]
    SM, HALF, MX, T1, ONE, LA, OA, PK = AK, AK+4, AK+6, AK+7, 16, 20, 24, AK
    DD = [0, 4, AQ, AQ+4]
    main = [sm(k) for k in SEQ[:42]]
    main += [mf(SX+4*Tt, KXR+16*Tt+4*ks, QF+4*ks, "0" if ks == 0 else vr(SX+4*Tt, 4)) for ks in range(4) for Tt in (0, 1)]
    main += [sm(k) for k in SEQ[42:]]
    main += [mf(SM, KF[ks], QF+4*ks, "0" if ks == 0 else vr(SM, 4)) for ks in range(4)]
    rdA = [f"ds_read_b128 {vr(A0+4*sg,4)}, v{MB+(sg>>1)} offset:{(sg&1)*1024}" for sg in range(2, 8)]
    dm = dma()
    X = {0: [f"ds_write_b128 v{MB}, v[0:3]", f"ds_write_b128 v{MB}, v[4:7] offset:1024"]}
    V = {}
    add(X, PB1, ["s_waitcnt lgkmcnt(0)", "s_barrier"] + rdA[:2]); add(X, PB1+1, rdA[2:4]); add(X, PB1+2, rdA[4:6])
    vm = dm[:4] + (merged["flagld"] if merged else []) + [f"buffer_store_dwordx4 {vr(SX+4*i,4)}, v{L16}, s[4:7], s{67+i} offen sc1" for i in (0, 1)]
    for g, x in zip(PS, vm): X[g] = [x] + X.get(g, []) if g == PB1 else X.get(g, []) + [x]
    add(X, 22, dm[4:]); add(X, 30, [f"s_add_u32 s67, s67, {32*4096}", f"s_add_u32 s68, s68, {32*4096}"])
    add(X, PW, [f"s_waitcnt vmcnt({8 if merged else 6})"])
    if merged: add(X, PB1+1, merged["flag"](tag)); assert PS[4] <= PB1
    for k, (r, g) in STG.items():
        if g is not None: add(X, g, wrd(k)[:1]); add(X, g+1, wrd(k)[1:])
    for i in range(8): add(V, (list(range(PW, 25)) + [47, 48, 49, 45, 47, 48, 49, 45])[i], [f"v_mov_b32 v{i}, 0"])
    def hsum(acc): return [f"v_add_f32 v{acc+i}, v{acc+i}, v{acc+i+2}" for i in (0, 1, 4, 5)] + [f"v_cvt_pk_bf16_f32 v{acc+i}, v{acc+i}, v{acc+4+i}" for i in (0, 1)]
    def hwr(acc, off): return [f"ds_write2_b32 v{QKW}, v{acc}, v{acc+1} offset0:{off//4} offset1:{(off+QSTR)//4}"]
    for i, x in enumerate(hsum(AQ)): add(V, 25+i, [x])
    add(X, 31, hwr(AQ, 0))
    rq = [f"ds_read_b128 {vr(QF+4*ks,4)}, v{QKR} offset:{ks*64}" for ks in range(4)]
    add(X, PB2, ["s_waitcnt lgkmcnt(0)", "s_barrier"] + rq[:2]); add(X, PB2+1, rq[2:])
    for i in range(8): add(V, (31, 32, 33, 34, 35, 43, 43, 46)[i], [f"v_mov_b32 v{AQ+7-i}, 0"])
    for i, x in enumerate(hsum(AK)): add(V, 36+i, [x])
    add(X, 42, hwr(AK, KOFF))
    rk = [f"ds_read_b128 {vr(KF[ks],4)}, v{T1} offset:{KOFF+ks*64}" for ks in range(4)]
    add(X, PB3, ["s_waitcnt lgkmcnt(0)", "s_barrier"] + rk[:2]); add(X, PB3+1, rk[2:])
    add(V, 42, [f"v_xor_b32 v{T1}, {QX4}, v{QKR}", f"v_cndmask_b32 v{T1}, v{QKR}, v{T1}, s[12:13]"])
    for i in range(4): add(V, (44, 44, 46, 50)[i], [f"v_mov_b32 v{ONE+i}, 0x3f803f80"])
    for i in range(4): add(V, 51+i, [f"v_cndmask_b32 v{SX+i}, v{SX+i}, v{SX+4+i}, s[12:13]"])
    cv = [f"v_cvt_pk_bf16_f32 v{AV+i}, v{AV+2*i}, v{AV+2*i+1}" for i in range(4)]
    add(V, 55, [f"v_max3_f32 v{MX}, v{SX}, v{SX+1}, v{SX+2}"]); add(V, 56, [f"v_max_f32 v{MX}, v{MX}, v{SX+3}", cv[0]])
    add(V, 57, [f"v_max_f32_dpp v{MX}, v{MX}, v{MX} quad_perm:[2,3,0,1] row_mask:0xf bank_mask:0xf", f"v_max_f32_dpp v{T1}, v{MX}, v{MX} quad_perm:[2,3,0,1] row_mask:0xf bank_mask:0xf"][::-1])
    add(V, 58, [cv[1], f"v_permlane32_swap_b32 v{MX}, v{T1}"])
    add(V, 59, cv[2:] + [f"v_max_f32 v{MX}, v{MX}, v{T1}"] + [f"v_mov_b32 v{HALF+i}, 0x3f003f00" for i in (0, 1)] + [f"s_cmp_eq_u32 s64, {nsteps-1}", f"s_cbranch_scc1 L{tag}_end", "s_nop 0"])
    e.gaps(main, X, V, {23: lambda: T(1), 35: lambda: T(2), 49: lambda: T(3)})
    PM = SM + 2
    fm = lambda r: f"v_fma_f32 v{r}, v{r}, s78, -v{T1}"
    ex = lambda r: f"v_exp_f32 v{r}, v{r}"
    dp = lambda d, s, q: f"v_mov_b32_dpp v{d}, v{s} quad_perm:[{q},{q+1},{q},{q+1}] row_mask:0xf bank_mask:0xf"
    e(f"""v_max3_f32 v{MX}, v{MX}, v{SM}, v{SM+1}
    v_max3_f32 v{T1}, v{MX}, v{SM+2}, v{SM+3}
    v_max3_f32 v{MX}, v{MX}, v{SM+2}, v{SM+3}
    s_nop 1
    v_permlane16_swap_b32 v{MX}, v{T1}
    v_max_f32 v{MX}, v{MX}, v{T1}
    v_mul_f32 v{T1}, s78, v{MX}""")
    for x in [fm(SM), fm(SM+1), ex(SM), ex(SM+1), fm(SX), fm(SX+1), f"v_cvt_pk_bf16_f32 v{PM}, v{SM}, v{SM+1}", f"v_cvt_pk_bf16_f32 v{PM+1}, v{SM}, v{SM+1}",
              fm(SX+2), fm(SX+3), mf16(LA, HALF, PM, "0"), ex(SX), mf16(OA, AV, PM, "0"), ex(SX+1), mf16(OA+4, AV+2, PM, "0"), ex(SX+2), ex(SX+3),
              f"v_cvt_pk_bf16_f32 v{SX+4}, v{SX}, v{SX+1}", f"v_cvt_pk_bf16_f32 v{SX+5}, v{SX+2}, v{SX+3}", "s_nop 0",
              dp(SX, SX+4, 0), dp(SX+2, SX+4, 2), dp(SX+1, SX+5, 0), dp(SX+3, SX+5, 2), "s_nop 1"]: e(x)
    T(4)
    XO = QF + 12
    e(mf(LA, ONE, SX, vr(LA, 4))); e(f"v_xor_b32 v{XO+1}, 1024, v{OX}\nv_xor_b32 v{XO+2}, 2048, v{OX}")
    e(mf(OA, VX, SX, vr(OA, 4))); e(f"v_xor_b32 v{XO+3}, 3072, v{OX}"); e(mf(OA+4, VX+4, SX, vr(OA+4, 4)))
    e(f"v_rcp_f32 v{LA}, v{LA}\ns_nop 2")
    for i in range(8): e(f"v_mul_f32 v{OA+i}, v{OA+i}, v{LA}")
    for i in range(4): e(f"v_cvt_pk_bf16_f32 v{OA+i}, v{OA+i}, v{OA+4+i}")
    e(f"s_mov_b64 exec, s[14:15]\nds_write_b128 v{OX}, {vr(OA,4)}\ns_mov_b64 exec, -1")
    T(5)
    OF = [OA, QF, QF+4, QF+8]
    order = [0, 1, 2, 3, 4, 5, 8, 9, 12, 13, 6, 7, 10, 14, 11, 15]
    main = [f"v_smfmac_f32_16x16x64_bf16 {vr(DD[op&3],4)}, {vr(OF[op>>2],4)}, {wreg((3, op>>1, op&1))}, v{IDX}" for op in order]
    X = {PB4: [f"s_waitcnt vmcnt({3 if merged else 2}) lgkmcnt(0)", "s_barrier"] + [f"ds_read_b128 {vr(OF[j],4)}, v{XO+j}" for j in (1, 2, 3)],
         13: ["s_add_u32 s37, s72, 0x8000"], 14: [f"buffer_store_dwordx4 {vr(PK,4)}, v{INS}, s[4:7], s72 offen{sc}"]}
    def pk(u, dst): return [f"v_cvt_pk_bf16_f32 v{dst+2*aa+i}, v{DD[2*u+aa]+2*i}, v{DD[2*u+aa]+2*i+1}" for aa in (0, 1) for i in (0, 1)]
    tagop = lambda r: f"v_and_or_b32 v{r}, v{r}, -2, s39"
    p0 = pk(0, PK); p1 = pk(1, PK+4)
    V = {10: p0[:1], 11: [tagop(PK), p0[1]], 12: p0[2:3], 13: p0[3:], 15: [p1[0], tagop(PK+4), p1[1], "s_nop 2", p1[2], p1[3]]}
    il = [f"v_and_b32 v17, 0x330, v{L16}", f"v_and_b32 v18, 0x30, v{L16}", "v_lshl_add_u32 v17, v18, 1, v17", "v_add_u32 v17, v18, v17", f"v_bfe_u32 v18, v{L16}, 6, 2",
          f"v_lshl_add_u32 v{INL}, v18, 4, v17"]
    for i, x in enumerate(il): V[3+i] = [x]
    X[12] = ["s_add_u32 s58, s72, s74", f"s_mov_b32 s75, {SPIN}"]
    if merged: V[9] = [f"v_readfirstlane_b32 s56, v{MST}"]
    e.gaps(main, X, V)
    a(f"buffer_store_dwordx4 {vr(PK+4,4)}, v{INS}, s[4:7], s37 offen{sc}")
    T(6)
    D0, D1, t0, t1, t2, t3 = AK, AK+4, AQ, AQ+1, AQ+2, AQ+3
    pr = ["s_mov_b64 s[60:61], -1", "s_mov_b64 s[62:63], -1", "v_mov_b32 v4, 0x3f80", "v_mov_b32 v5, 0x3f800000", "v_cndmask_b32 v4, v4, v5, s[54:55]"]
    pr += [f"v_cndmask_b32 v{i}, 0, v4, s[{46+2*i}:{47+2*i}]" for i in range(4)]
    pr += f"""v_mov_b32 v{t3}, -1
    v_lshrrev_b32 v{t0}, 8, v{L16}
    v_and_b32 v{MST}, 0xf0, v{L16}
    v_lshl_add_u32 v{MST}, v{t0}, 2, v{MST}
    s_mov_b32 s101, s64
    s_add_u32 s64, s64, 1
    s_and_b32 s37, s64, 3
    s_lshl_b32 s37, s37, 13
    s_add_u32 s70, s37, {hex(WS_MEMF)}
    s_add_u32 s69, s70, s76
    s_add_u32 s70, s70, s100
    s_xor_b32 s71, s70, 0x4000""".split("\n")
    if merged: pr += merged["upd"].split("\n")
    pr += preA()
    for x in pr[:PD1]: a(x)
    a(f"""buffer_load_dwordx4 {vr(D0,4)}, v{INL}, s[4:7], s58 offen sc1
    buffer_load_dwordx4 {vr(D1,4)}, v{INL}, s[4:7], s58 offen offset:1024 sc1""")
    for x in pr[PD1:]: a(x)
    for i in range(PD4): a("s_nop 15")
    if not PV1: a(f"s_branch L{tag}_p1w")
    a.label(f"L{tag}_p1")
    a(f"""s_mov_b64 exec, s[60:61]
    buffer_load_dwordx4 {vr(D0,4)}, v{INL}, s[4:7], s58 offen sc1
    s_mov_b64 exec, s[62:63]
    buffer_load_dwordx4 {vr(D1,4)}, v{INL}, s[4:7], s58 offen offset:1024 sc1
    s_mov_b64 exec, -1
    L{tag}_p1w:
    s_sub_u32 s75, s75, 1
    s_cselect_b64 s[56:57], 0, -1
    s_waitcnt vmcnt({PV1})
    v_and_b32 v{t0}, 1, v{D0}
    v_and_b32 v{t1}, 1, v{D1}
    v_mfma_f32_16x16x32_bf16 v[4:7], {vr(D0,4)}, v[0:3], 0
    v_cmp_ne_u32 s[60:61], s39, v{t0}
    v_cmp_ne_u32 s[62:63], s39, v{t1}
    v_mfma_f32_16x16x32_bf16 v[4:7], {vr(D1,4)}, v[0:3], v[4:7]
    s_or_b64 vcc, s[60:61], s[62:63]
    s_and_b64 vcc, vcc, s[56:57]
    s_cbranch_vccnz L{tag}_p1
    s_nop 4
    v_add_f32 v4, v4, v5
    v_add_f32 v6, v6, v7
    v_add_f32 v4, v4, v6
    s_nop 1
    v_mov_b32_dpp v5, v4 row_shl:4 row_mask:0xf bank_mask:0xf
    s_mov_b64 exec, s[44:45]
    v_cvt_pk_bf16_f32 v{t2}, v4, v5
    buffer_store_dword v{t2}, v{MST}, s[4:7], s70 offen{sc}
    buffer_store_dword v{t3}, v{MST}, s[4:7], s71 offen{sc}
    s_mov_b64 exec, -1
    s_xor_b32 s72, s72, 0x40000
    s_lshr_b32 s39, s64, 1
    s_and_b32 s39, s39, 1
    s_mov_b32 s75, {SPIN}""")
    T(7)
    if PV1: a("s_waitcnt vmcnt(2)")
    if ts:
        a("s_waitcnt lgkmcnt(0)\ns_mov_b64 exec, 1")
        for i in range(8): a(f"v_mov_b32 v{AK+i}, s{TSR(i)}")
        a(f"s_lshl_b32 s37, s28, 2\ns_add_u32 s37, s37, s29\ns_lshl_b32 s37, s37, 6\ns_add_u32 s37, s37, s64\ns_lshl_b32 s37, s37, 5\ns_add_u32 s37, s37, {hex(WS_TS)}")
        a(f"buffer_store_dwordx4 {vr(AK,4)}, off, s[4:7], s37\nbuffer_store_dwordx4 {vr(AK+4,4)}, off, s[4:7], s37 offset:16\ns_mov_b64 exec, -1\ns_nop 1")
    a("s_mov_b64 s[58:59], -1\ns_mov_b64 s[62:63], -1")
    for x in preB(): a(x)
    for i in range(PD2 - 1): a("s_nop 15")
    if PV2: a(f"""buffer_load_dwordx4 v[0:3], v{L16}, s[4:7], s69 offen sc1
    buffer_load_dwordx4 v[4:7], v{L16}, s[4:7], s69 offen offset:1024 sc1""")
    for i in range(PD3): a("s_nop 15")
    a(f"s_branch L{tag}_p2")
    a.label(f"L{tag}_end")
    for x in kmrd(): a(x)
    a(f"buffer_store_dwordx4 {vr(AV,4)}, v{L16}, s[4:7], s68 offen sc1\ns_waitcnt lgkmcnt(0)")
    a(f"buffer_store_dwordx4 {vr(SX,4)}, v{L16}, s[4:7], s67 offen sc1")
    a("s_waitcnt vmcnt(0)")
    if merged: merged["final"](a, tag)
    else: a("s_endpgm")
```

```python
from common import *
D_RDY, D_PD, D_CP, D_OP, D_KV = 8, 9, 10, 18, 32
SPINW = 400000
def poll(a, name, load, ext, sleep=2):
    a(f"s_mov_b32 s57, {SPINW}")
    a.label(name)
    a(f"{load}\ns_waitcnt vmcnt(0)\nv_readfirstlane_b32 s56, v8\n{ext}\ns_cbranch_scc1 {name}_ok\ns_sleep {sleep}\ns_sub_u32 s57, s57, 1\ns_cbranch_scc0 {name}")
    a.label(name + "_ok")
def lanes(a):
    a("v_and_b32 v1, 63, v0\nv_and_b32 v2, 15, v1\nv_lshrrev_b32 v3, 4, v1\nv_lshlrev_b32 v4, 4, v1")

def load_frags(a, srd_, voff, rowbytes, sbase, nks, dst, consts=0):
    def issue(b):
        for k2 in range(2):
            for j in range(8):
                a(f"s_add_u32 s63, s{sbase}, {((b*2+k2)*32 + j)*rowbytes}")
                a(f"buffer_load_dword v{16+(b%3)*16+k2*8+j}, v{voff}, s[{srd_}:{srd_+3}], s63 offen")
    def consume(b):
        for k2 in range(2):
            for t in range(2):
                for p in range(4):
                    s0 = 16+(b%3)*16+k2*8+2*p
                    k, r = dst((b*2+k2), t); r += p
                    if k == "v": a(f"v_perm_b32 v{r}, v{s0+1}, v{s0}, s{60+t}")
                    else: a(f"v_perm_b32 v{8+p}, v{s0+1}, v{s0}, s{60+t}\nv_accvgpr_write_b32 a{r}, v{8+p}")
    n = nks // 2
    a("s_mov_b32 s60, 0x05040100\ns_mov_b32 s61, 0x07060302")
    issue(0); issue(1)
    for b in range(n):
        if b + 2 < n: issue(b + 2)
        a(f"s_waitcnt vmcnt({16*min(2, n-1-b)})")
        consume(b)

def proj(a, done_label, flags=True):
    lanes(a)
    a("""s_and_b32 s41, s40, 1
    s_lshr_b32 s42, s40, 1
    s_and_b32 s42, s42, 31
    s_lshr_b32 s43, s40, 6
    s_add_u32 s44, s43, 1
    s_cmp_eq_u32 s44, 3
    s_cselect_b32 s44, 0, s44
    s_lshl_b32 s45, s44, 3
    s_add_u32 s45, s45, 16
    s_load_dwordx2 s[12:13], s[0:1], s45
    s_mov_b32 s14, 0x400000
    s_mov_b32 s15, 0x00020000""")
    srd(a, 16, "x")
    a("""v_lshlrev_b32 v5, 10, v2
    v_lshl_add_u32 v5, v3, 4, v5
    v_lshlrev_b32 v6, 16, v3
    v_lshl_add_u32 v6, v2, 2, v6
    s_lshl_b32 s46, s42, 8
    s_lshl_b32 s47, s29, 6
    s_add_u32 s46, s46, s47
    s_lshr_b32 s47, s29, 1
    s_lshl_b32 s47, s47, 14
    s_and_b32 s48, s29, 1
    s_lshl_b32 s48, s48, 9
    s_add_u32 s47, s47, s48
    s_lshl_b32 s48, s41, 15
    s_add_u32 s47, s47, s48
    s_lshl_b32 s49, s29, 13
    s_waitcnt lgkmcnt(0)""")
    def dma():
        for i in range(8):
            a(f"s_add_u32 m0, s49, {i*1024 - i*64}\ns_nop 0")
            a(f"buffer_load_dwordx4 v5, s[16:19], s47 offen offset:{i*64} lds")
        a("s_add_u32 s47, s47, 0x10000\ns_xor_b32 s49, s49, 0x8000")
    dma()
    load_frags(a, 12, 6, 8192, 46, 16, lambda ks, t: ("v", 128 + (ks*2+t)*4))
    poll(a, "L_pj_rdy", f"buffer_load_dword v8, off, s[8:11], 0 offset:{D_RDY*4} sc1", "s_and_b32 s56, s56, 0xffff\ns_cmp_ge_u32 s56, 32", 8)
    a("""s_lshl_b32 s50, s44, 24
    s_lshl_b32 s48, s41, 18
    s_add_u32 s50, s50, s48
    s_lshl_b32 s48, s42, 13
    s_add_u32 s50, s50, s48
    s_mov_b32 s51, 0
    s_mov_b32 s52, 0
    s_lshl_b32 s53, s42, 7
    s_add_u32 s53, s53, 0x4701000
    s_lshl_b32 s48, s43, 1
    s_add_u32 s53, s53, s48
    s_add_u32 s53, s53, s41
    s_cmp_eq_u32 s44, 2
    s_cbranch_scc1 L_pjV""")
    for var in ("K", "V"):
        if var == "V": a.label("L_pjV")
        a(f"s_lshl_b32 s48, s29, {10 if var == 'K' else 11}\ns_add_u32 s50, s50, s48")
        a.label(f"L_pj{var}_loop")
        a("s_waitcnt vmcnt(0)\ns_barrier")
        if flags:
            a(f"""s_cmp_lg_u32 s29, 0
            s_cbranch_scc1 L_pj{var}_nf
            s_cmp_eq_u32 s43, 2
            s_cbranch_scc1 L_pj{var}_nf
            s_mov_b64 exec, 1
            v_mov_b32 v8, s51
            buffer_store_byte v8, off, s[4:7], s53 sc1
            s_mov_b64 exec, -1""")
            a.label(f"L_pj{var}_nf")
        a(f"s_cmp_eq_u32 s51, 32\ns_cbranch_scc1 L_pj_done\ns_cmp_eq_u32 s51, 31\ns_cbranch_scc1 L_pj{var}_nd")
        dma()
        a.label(f"L_pj{var}_nd")
        a("v_add_u32 v7, s52, v4\ns_xor_b32 s52, s52, 0x8000")
        def rd(c):
            for k in range(4):
                for T in range(2): a(f"ds_read_b128 {vr(16+(c&1)*32+(k*2+T)*4,4)}, v7 offset:{(T*16+c*4+k)*1024}")
        rd(0)
        for c in range(4):
            if c < 3: rd(c + 1)
            a(f"s_waitcnt lgkmcnt({8 if c < 3 else 0})")
            for k in range(4):
                ks = c*4 + k
                for T in range(2):
                    for t in range(2):
                        X = vr(16+(c&1)*32+(k*2+T)*4, 4); W = vr(128+(ks*2+t)*4, 4); D = vr(80+(T*2+t)*4, 4)
                        ops = f"{W}, {X}" if var == "K" else f"{X}, {W}"
                        a(f"v_mfma_f32_16x16x32_bf16 {D}, {ops}, {'0' if ks == 0 else D}")
        a("s_nop 7")
        if var == "K":
            for T in range(2):
                for i in range(4): a(f"v_cvt_pk_bf16_f32 v{96+T*4+i}, v{80+T*8+i}, v{84+T*8+i}")
            a("s_add_u32 s48, s50, 4096")
            a("buffer_store_dwordx4 v[96:99], v4, s[4:7], s50 offen sc1\nbuffer_store_dwordx4 v[100:103], v4, s[4:7], s48 offen sc1")
        else:
            for t in range(2):
                for T in range(2):
                    for i in range(2): a(f"v_cvt_pk_bf16_f32 v{96+t*4+T*2+i}, v{80+T*8+t*4+2*i}, v{81+T*8+t*4+2*i}")
            a("buffer_store_dwordx4 v[96:99], v4, s[4:7], s50 offen sc1\nbuffer_store_dwordx4 v[100:103], v4, s[4:7], s50 offen offset:1024 sc1")
        a(f"s_add_u32 s50, s50, 0x80000\ns_add_u32 s51, s51, 1\ns_branch L_pj{var}_loop")
    a.label("L_pj_done")
    a(f"""s_cmp_lg_u32 s29, 0
    s_cbranch_scc1 {done_label}
    s_mov_b64 exec, 1
    v_mov_b32 v8, 1
    buffer_atomic_add v8, off, s[8:11], 0 offset:{D_PD*4}
    s_mov_b64 exec, -1
    s_branch {done_label}""")
```

```python
import sys
from common import *
from chain import *
from proj import *
from attn import *
from conv import *
ts = eval(sys.argv[2]) if len(sys.argv) > 2 else False
a = Asm()
roles(a, "L_work", "L_exit")
UPD = """s_and_b32 s99, s56, 0xff
    s_bfe_u32 s97, s56, 0x80010
    s_min_u32 s99, s99, s97
    s_bfe_u32 s97, s56, 0x80008
    s_lshr_b32 s56, s56, 24
    s_min_u32 s97, s97, s56
    s_lshl_b32 s99, s99, 1
    s_lshl1_add_u32 s97, s97, 1
    s_min_u32 s99, s99, s97"""
def wait_proj(a, seg):
    poll(a, f"L_ch_wp{seg}", f"buffer_load_dword v8, off, s[4:7], s95 sc1", UPD + f"\ns_cmp_gt_u32 s99, {seg}", 1)
def wait_proj_loop(tag):
    return ["s_add_u32 s96, s64, 1", "s_min_u32 s96, s96, 63", "s_cmp_le_u32 s99, s96", f"s_cbranch_scc1 L{tag}_wp", f"L{tag}_wpr:"]
FLD = f"buffer_load_dword v{MST}, off, s[4:7], s95 sc1"
def final(a, tag):
    a(f"""s_barrier
    s_cmp_lg_u32 s29, 0
    s_cbranch_scc1 L{tag}_fin
    s_mov_b64 exec, 1
    v_mov_b32 v8, 64
    buffer_store_byte v8, off, s[4:7], s98 sc1
    s_waitcnt vmcnt(0)""")
    a.label(f"L{tag}_fin")
    a("s_endpgm")
    a.label(f"L{tag}_wp")
    a(f"s_mov_b32 s57, {SPINW}")
    a.label(f"L{tag}_wp2")
    a(f"{FLD}\ns_waitcnt vmcnt(0)\nv_readfirstlane_b32 s56, v{MST}")
    a(UPD + "\ns_cmp_gt_u32 s99, s96")
    a(f"s_cbranch_scc1 L{tag}_wpr\ns_sub_u32 s57, s57, 1\ns_cbranch_scc0 L{tag}_wp2\ns_branch L{tag}_wpr")
def flag(tag):
    return ["s_mov_b64 exec, 1", f"buffer_store_byte v27, off, s[4:7], s98 sc1", "s_mov_b64 exec, -1"]
chain(a, ts=ts, merged=dict(wait_proj=wait_proj, wait_proj_loop=wait_proj_loop, final=final, flag=flag, flagld=[FLD], upd=UPD))
a.label("L_work")
a("s_sub_u32 s40, s30, 32\ns_cmp_ge_u32 s40, 192\ns_cbranch_scc1 L_second")
proj(a, "L_second")
a.label("L_second")
a("""s_sub_u32 s40, s30, 32
s_cmp_lt_u32 s40, 64
s_cbranch_scc1 L_oproj
s_sub_u32 s40, s40, 64
s_cmp_lt_u32 s40, 32
s_cbranch_scc1 L_attn
s_cmp_lt_u32 s40, 96
s_cbranch_scc1 L_exit
s_sub_u32 s40, s40, 96""")
conv(a)
a.label("L_oproj"); oproj(a)
a.label("L_attn"); attn(a)
a.label("L_exit"); a("s_endpgm")
for p in check(a.lines, "k"): print(p)
K = NAME + "_kernel"
txt = header(["; @launch grid=(256,1,1) block=(256,1,1) lds=163840"]) + kernel_text(K, a.text()) + '.section .rodata,"a"\n' + descriptor(K)
open(sys.argv[1], "w").write(txt)
print(len(txt), "bytes", len(a.lines), "lines")
```

```python
from common import *
L_KX, L_MEM, L_Q, L_W = 0, 16384, 24576, 32768
L_O = L_Q + 3072
QSTR, KOFF, QX4 = 576, 256, 4128
LDS_CHAIN = 163840
SPIN = 20000
import os, re
PB1, PB2, PB3, PB4, PS, PW = eval(os.environ.get('PB', '(4, 35, 47, 0, (1,2,3,3,4,7,8), 41)'))
PV1, PD1, PD4, PV2, PD2, PD3 = eval(os.environ.get('PRM', '(0, 72, 0, 2, 2, 2)'))
LW = int(os.environ.get('LW', 0))
CYC = int(os.environ.get('CYC', 0))
CH = eval(os.environ.get('CH', '(4, 10)'))
CEXP = 0.08838834764831845 * 1.4426950408889634
import struct
def f32(x): return hex(struct.unpack("<I", struct.pack("<f", x))[0])

def roles(a, nchain_label, exit_label):
    a(f"""s_cmp_ge_u32 s2, 256
    s_cbranch_scc1 {exit_label}""")
    srd(a, 4, "ws"); srd(a, 8, "dbg")
    a("""s_getreg_b32 s31, hwreg(HW_REG_XCC_ID)
    s_and_b32 s31, s31, 7
    v_readfirstlane_b32 s29, v0
    s_lshr_b32 s29, s29, 6
    s_waitcnt lgkmcnt(0)
    s_cmp_lg_u32 s29, 0
    s_cbranch_scc1 L_role_wait
    s_mov_b64 exec, 1
    s_mov_b32 s32, 0
    v_mov_b32 v3, 0""")
    a.label("L_role_try")
    a("""s_add_u32 s33, s31, s32
    s_and_b32 s33, s33, 7
    s_lshl_b32 s34, s33, 2
    v_mov_b32 v1, 1
    buffer_atomic_add v1, off, s[8:11], s34 sc0
    s_waitcnt vmcnt(0)
    v_readfirstlane_b32 s35, v1
    s_cmp_lt_u32 s35, 32
    s_cbranch_scc1 L_role_got
    s_add_u32 s32, s32, 1
    s_cmp_lt_u32 s32, 8
    s_cbranch_scc1 L_role_try
    s_mov_b32 s33, 8
    s_mov_b32 s35, 0""")
    a.label("L_role_got")
    a("""s_lshl_b32 s33, s33, 5
    s_add_u32 s33, s33, s35
    s_lshl_b32 s32, s32, 16
    s_or_b32 s33, s33, s32
    v_mov_b32 v1, s33
    ds_write_b32 v3, v1
    s_mov_b64 exec, -1
    s_waitcnt lgkmcnt(0)""")
    a.label("L_role_wait")
    a(f"""s_barrier
    v_mov_b32 v3, 0
    ds_read_b32 v1, v3
    s_waitcnt lgkmcnt(0)
    v_readfirstlane_b32 s30, v1
    s_barrier
    s_lshr_b32 s36, s30, 16
    s_and_b32 s30, s30, 0xffff
    s_cmp_ge_u32 s30, 256
    s_cbranch_scc1 {exit_label}
    s_cmp_ge_u32 s30, 32
    s_cbranch_scc1 {nchain_label}""")

A0, AQ, AK, AV, KXR, QF, VX, SX = 0, 32, 40, 48, 56, 88, 104, 112
IDX, L16, WOB, QKW, QKR, INS, OX, MST = 120, 121, 122, 123, 124, 125, 126, 127
INL = 25
SEQ = [(m, sg, t) for m in (0, 1, 2) for sg in (0, 1) for t in (0, 1)] + [(m, sg, t) for m in (0, 1, 2) for sg in range(2, 8) for t in (0, 1)]
RING = {0: (8, None), 1: (16, None), 2: (QF, None), 3: (QF+8, None), 16: (QF, 8), 18: (QF+8, 10), 20: (SX, 12), 24: (QF, 16), 26: (QF+8, 18),
        28: (SX, 20), 32: (QF, 24), 34: (QF+8, 26), 36: (SX, 28)}
WRING = {0: (8, 40), 1: (KXR+8, 50), 2: (KXR+24, 52)}
LOC = {}; STG = {}
_l = 0; _r = 0
for i, k in list(enumerate(SEQ)) + [(100+op, (3, op >> 1, op & 1)) for op in range(16)]:
    rg = RING.get(i) if i < 100 else WRING.get(i - 100)
    if rg: LOC[k] = ('l', _l); STG[k] = rg; _l += 1
    else: LOC[k] = ('a', _r*8) if _r < 32 else ('v', 128 + (_r-32)*8); _r += 1
assert _l == 16 and _r == 48
def wreg(k):
    c, r = LOC[k]
    return vr(STG[k][0], 8) if c == 'l' else vr(r, 8, c)
def wrd(k): return [f"ds_read_b128 {vr(STG[k][0]+4*i,4)}, v{WOB} offset:{LOC[k][1]*2048+i*1024}" for i in (0, 1)]

def dma():
    o = [f"buffer_load_dwordx4 v{L16}, s[4:7], s{65+(i>>1)} offen offset:{i*1024} sc1 lds" for i in range(4)]
    return o + [f"s_add_u32 s{sg}, s{sg}, {32*8192}" for sg in (65, 66)]

def TSR(i): return 80+2*i if i < 7 else 16
class Em:
    def __init__(s, a): s.a = a; s.pend = []
    def need(s, lns):
        k = None
        for ln in lns:
            if ln.endswith(":"): continue
            c = classify(ln); use = c["r"] | c["w"]
            for i, w in enumerate(s.pend):
                if w & use: k = min(k, len(s.pend)-1-i) if k is not None else len(s.pend)-1-i
        if k is not None: s.raw(f"s_waitcnt lgkmcnt({min(k, 15)})")
    def raw(s, ln):
        s.a(ln)
        m = re.search(r"lgkmcnt\((\d+)\)", ln)
        if m: n = int(m.group(1)); s.pend = s.pend[len(s.pend)-n:] if n else []
        if ln.startswith("ds_"): s.pend.append(classify(ln)["w"])
    def __call__(s, txt):
        for ln in txt.split("\n"):
            ln = ln.strip()
            if ln: s.need([ln]); s.raw(ln)
    def gaps(s, main, X, V, T={}):
        for i, m in enumerate(main):
            s(m)
            for x in X.get(i, []): s(x)
            s.need(V.get(i, []) + main[i+1:i+2])
            for x in V.get(i, []): s(x)
            if i in T: T[i]()

def chain(a, ts=False, merged=False, nsteps=64):
    a("s_mov_b32 s28, s30")
    if ts and 'rt' in ts: a("s_memrealtime s[80:81]")
    srd(a, 12, "Wq"); srd(a, 16, "Wk"); srd(a, 20, "Wv"); srd(a, 24, "Wo"); srd(a, 40, "mem0")
    a(f"""v_and_b32 v1, 63, v0
    v_lshlrev_b32 v{L16}, 4, v1
    v_and_b32 v2, 15, v1
    v_lshrrev_b32 v3, 4, v1
    s_lshl_b32 s37, s29, 15
    s_add_u32 s37, s37, {L_W}
    v_add_u32 v{WOB}, s37, v{L16}
    v_mov_b32 v4, 0x4444
    v_mov_b32 v5, 0xeeee
    v_and_b32 v6, 2, v2
    v_cmp_eq_u32 vcc, 0, v6
    s_nop 1
    v_cndmask_b32 v{IDX}, v5, v4, vcc""")
    a(f"""v_and_b32 v4, 1, v3
    v_mul_u32_u24 v4, {2*QSTR}, v4
    v_lshl_add_u32 v4, v2, 2, v4
    v_lshrrev_b32 v5, 1, v3
    v_mul_u32_u24 v5, {QX4}, v5
    v_xor_b32 v4, v4, v5
    s_lshl_b32 s37, s29, 6
    s_add_u32 s37, s37, {L_Q}
    v_add_u32 v{QKW}, s37, v4""")
    a(f"""v_lshrrev_b32 v4, 2, v2
    v_and_b32 v5, 1, v2
    v_lshl_add_u32 v12, v4, 1, v5
    v_and_b32 v4, 3, v12
    v_mul_u32_u24 v4, {QSTR}, v4
    v_lshl_add_u32 v4, v3, 4, v4
    v_lshrrev_b32 v5, 2, v12
    v_mul_u32_u24 v5, {QX4}, v5
    v_xor_b32 v4, v4, v5
    v_add_u32 v{QKR}, {L_Q}, v4""")
    a(f"""v_lshrrev_b32 v5, 2, v2
    v_lshl_add_u32 v4, v5, 2, v3
    v_lshlrev_b32 v4, 11, v4
    v_and_b32 v5, 3, v2
    v_lshl_add_u32 v4, v5, 4, v4
    s_lshl_b32 s37, s29, 16
    s_lshl_b32 s38, s28, 6
    s_add_u32 s37, s37, s38
    v_add_u32 v{INS}, s37, v4""")
    a(f"""v_lshl_add_u32 v4, v3, 2, v5
    v_lshlrev_b32 v4, 6, v4
    v_lshrrev_b32 v5, 2, v2
    v_lshl_add_u32 v4, v5, 4, v4
    s_lshl_b32 s37, s28, 2
    s_add_u32 s37, s37, s29
    s_lshl_b32 s38, s37, 11
    s_mov_b32 s74, s38
    v_add_u32 v{INL}, s38, v4""")
    a(f"""v_lshlrev_b32 v4, 4, v2
    v_lshl_add_u32 v4, v3, 2, v4
    s_lshl_b32 s100, s37, 6
    v_add_u32 v{MST}, s100, v4""")
    a("v_cmp_gt_u32 s[44:45], 4, v2")
    a("v_and_b32 v4, 1, v2\nv_lshrrev_b32 v5, 2, v2\nv_lshl_add_u32 v5, v4, 2, v5\nv_lshrrev_b32 v4, 1, v5")
    for i in range(4): a(f"v_cmp_eq_u32 s[{46+2*i}:{47+2*i}], {i}, v4")
    a("v_and_b32 v4, 1, v5\nv_cmp_eq_u32 s[54:55], 1, v4")
    a("v_mov_b32 v8, -1\nv_mov_b32 v9, -1\nv_mov_b32 v10, -1\nv_mov_b32 v11, -1")
    a(f"s_mov_b32 s56, {hex(WS_INBOX)}\ns_mov_b32 s57, {hex(WS_INBOX+0x40000)}\ns_waitcnt lgkmcnt(0)")
    for sl in (56, 57):
        for o in (0, 1024): a(f"buffer_store_dwordx4 v[8:11], v{INL}, s[4:7], s{sl} offen offset:{o} sc1")
    a("s_mov_b64 exec, s[44:45]")
    for sl in range(4):
        a(f"s_mov_b32 s58, {hex(WS_MEMF + sl*8192)}\nbuffer_store_dword v8, v{MST}, s[4:7], s58 offen sc1")
    a(f"s_mov_b64 exec, 1\nv_mov_b32 v9, 0\ns_lshl_b32 s98, s28, 7\ns_add_u32 s98, s98, {hex(WS_FL)}")
    for i in range(3): a(f"s_add_u32 s58, s98, {i*0x1000}\nbuffer_store_dword v9, off, s[4:7], s58 sc1")
    a("s_add_u32 s95, s98, 0x1000\ns_mov_b64 exec, -1\ns_nop 1")
    a("""s_lshl_b32 s38, s29, 2
    v_xor_b32 v6, s38, v2
    v_lshlrev_b32 v6, 4, v6
    v_lshl_add_u32 v6, v3, 13, v6
    s_and_b32 s37, s29, 1
    s_lshr_b32 s38, s29, 1
    s_lshl2_add_u32 s59, s38, s37
    s_lshl_b32 s37, s59, 15
    s_lshl_b32 s38, s28, 8
    s_add_u32 s37, s37, s38
    v_add_u32 v6, s37, v6
    s_lshl_b32 s59, s59, 10
    v_lshlrev_b32 v7, 12, v3
    v_lshl_add_u32 v7, v2, 3, v7
    s_lshl_b32 s37, s28, 17
    s_lshl_b32 s38, s29, 8
    s_add_u32 s37, s37, s38
    v_add_u32 v7, s37, v7
    v_lshrrev_b32 v4, 1, v3
    v_and_b32 v5, 1, v3
    v_lshl_add_u32 v4, v4, 2, v5
    v_lshlrev_b32 v4, 10, v4
    v_xor_b32 v5, s29, v3
    v_lshl_add_u32 v4, v5, 6, v4
    v_lshl_add_u32 v4, v2, 2, v4
    s_lshl_b32 s37, s29, 13
    v_add_u32 v8, s37, v4
    v_xor_b32 v9, 0x2000, v8
    v_xor_b32 v10, 0x4000, v8
    v_xor_b32 v11, 0x6000, v8
    s_mov_b32 s60, 0x05040100
    s_mov_b32 s61, 0x07060302""")
    e = Em(a); vq = []
    def vwait(tag): a(f"s_waitcnt vmcnt({len(vq) - 1 - max(i for i, x in enumerate(vq) if x == tag)})")
    groups = [(m, c, hb) for m in range(3) for c in range(2) for hb in range(2)]
    park = dict(zip([k for k in SEQ if LOC[k][0] == 'l'], [LOC[k][1] for k in LOC if k[0] == 3 and LOC[k][0] == 'v']))
    assert len(park) == 13
    def gissue(gi):
        m, c, hb = groups[gi]
        for j in range(4):
            for q in range(2):
                a(f"s_add_u32 m0, s59, {(gi % 5)*32768 + j*8192 + q*2048}\ns_mov_b32 s63, {((2*j+c)*64 + hb*32 + q*8)*8192}")
                a(f"buffer_load_dwordx4 v6, s[{12+4*m}:{15+4*m}], s63 offen lds"); vq.append(("g", gi))
    def gread(gi, j):
        st = 96 + (j % 3)*8; o = (gi % 5 & 1)*128
        for r in range(4):
            row = 8*(r & 1) + 2*(r >> 1) + o
            e(f"ds_read2st64_b32 {vr(st+2*r,2)}, v{8+j} offset0:{row} offset1:{row+1}")
    def gcons(gi, j):
        m, c, hb = groups[gi]; st = 96 + (j % 3)*8
        for t in range(2):
            k = (m, 2*j+c, t); kd, rr = LOC[k]
            if kd == 'l': kd, rr = 'v', park[k]
            for r in range(4): e(f"v_perm_b32 v{rr+4*hb+r if kd == 'v' else 12+r}, v{st+2*r+1}, v{st+2*r}, s{60+t}")
            if kd == 'a':
                for r in range(4): e(f"v_accvgpr_write_b32 a{rr+4*hb+r}, v{12+r}")
    NS = 5
    def issue(bi):
        base = 16 + (bi % NS) * 16
        a(f"s_xor_b32 s62, s29, {bi >> 1}\ns_lshl_b32 s62, s62, 15")
        for x in range(8):
            a(f"s_add_u32 s63, s62, {(16*(x >> 2) + (x & 3))*1024 + (bi & 1)*128}")
            a(f"buffer_load_dwordx2 {vr(base+2*x,2)}, v7, s[24:27], s63 offen"); vq.append(("w", bi))
    def consume(bi):
        base = 16 + (bi % NS) * 16
        for t in range(2):
            kd, rr = LOC[(3, bi, t)]
            for rho in range(8):
                sr_ = base + (rho >> 1)*4 + (rho & 1)
                e(f"v_perm_b32 v{rr+rho if kd == 'v' else 96+t*8+rho}, v{sr_+2}, v{sr_}, s{60+t}")
            if kd == 'l':
                for i in range(2): e(f"ds_write_b128 v{WOB}, {vr(96+t*8+4*i,4)} offset:{rr*2048 + i*1024}")
                e("s_waitcnt lgkmcnt(0)")
    a("v_mov_b32 v5, v12")
    for gi in range(5): gissue(gi)
    a('s_waitcnt vmcnt(40)\ns_barrier')
    a("""s_cmp_lg_u32 s29, 0
    s_cbranch_scc1 L_ch_noinc
    s_cmp_lg_u32 s36, 0
    s_cselect_b32 s58, 0x10001, 1
    s_mov_b64 exec, 1
    v_mov_b32 v13, s58
    buffer_atomic_add v13, off, s[8:11], 0 offset:32
    s_mov_b64 exec, -1""")
    a.label("L_ch_noinc")
    vq.insert(0, 0)
    for gi in range(12):
        vwait(("g", gi)); a("s_barrier")
        if 1 <= gi and gi + 4 < 12: gissue(gi + 4)
        if gi >= 7: issue(gi - 7)
        d = ((gi % 5) >> 1) - (((gi-1) % 5) >> 1) if gi else 0
        if d:
            for j in range(4): a(f"v_add_u32 v{8+j}, {hex((d*65536) & 0xffffffff)}, v{8+j}")
        gread(gi, 0); gread(gi, 1)
        for j in range(4):
            if j + 2 < 4: gread(gi, j + 2)
            gcons(gi, j)
    a("s_barrier\nv_mov_b32 v12, v5")
    for k, rr in park.items():
        for i in range(2): a(f"ds_write_b128 v{WOB}, {vr(rr+4*i,4)} offset:{LOC[k][1]*2048 + i*1024}")
    a("s_waitcnt lgkmcnt(0)")
    for bi in range(8):
        vwait(("w", bi)); consume(bi)
        if bi + NS < 8: issue(bi + NS)
    if ts and 'rt' in ts: a("s_memrealtime s[82:83]")
    a(f"""s_lshl_b32 s37, s28, 13
    s_lshl_b32 s38, s29, 11
    s_add_u32 s37, s37, s38
    s_add_u32 s65, s37, {hex(WS_KX)}
    s_add_u32 s66, s37, {hex(WS_VX-2048)}
    s_lshr_b32 s37, s37, 1
    s_add_u32 s67, s37, {hex(WS_KM)}
    s_add_u32 s68, s37, {hex(WS_VM)}
    s_lshl_b32 s73, s38, 1
    s_mov_b32 m0, s73
    s_mov_b32 s64, 0
    s_mov_b32 s72, {hex(WS_INBOX)}""")
    if merged: merged["wait_proj"](a, 1)
    a(f"s_sub_u32 s67, s67, {32*4096}\ns_sub_u32 s68, s68, {32*4096}")
    for x in dma(): a(x)
    a("""v_lshlrev_b32 v4, 10, v12
    v_lshl_add_u32 v4, v3, 5, v4
    v_and_b32 v5, 2, v2
    v_cmp_ne_u32 s[12:13], 0, v5
    v_lshl_add_u32 v4, v5, 3, v4
    s_lshl_b32 s37, s29, 8
    buffer_load_dwordx4 v[8:11], v4, s[40:43], s37 offen
    buffer_load_dwordx4 v[12:15], v4, s[40:43], s37 offen offset:128""")
    for i in range(2):
        a(f"s_add_u32 s37, s74, {hex(WS_INBOX + i*0x40000)}")
        for o in (0, 1024): a(f"buffer_load_dwordx4 v[16:19], v{L16}, s[4:7], s37 offen offset:{o}")
    a("s_lshl_b32 s38, s29, 11")
    for i in range(4):
        a(f"s_add_u32 s37, s38, {hex(WS_MEMF + i*8192)}")
        for o in (0, 1024): a(f"buffer_load_dwordx4 v[16:19], v{L16}, s[4:7], s37 offen offset:{o}")
    a(f"s_mov_b32 s75, {SPIN*10}")
    a.label("L_ch_rdy")
    a("""buffer_load_dword v16, off, s[8:11], 0 offset:32 sc1
    s_waitcnt vmcnt(0)
    v_readfirstlane_b32 s37, v16
    s_and_b32 s38, s37, 0xffff
    s_sub_u32 s75, s75, 1
    s_cselect_b32 s38, 32, s38
    s_cmp_lt_u32 s38, 32
    s_cbranch_scc1 L_ch_rdy
    s_barrier""")
    if ts and 'rt' in ts or not merged: a("s_memrealtime s[84:85]")
    if CYC: a("s_memtime s[84:85]")
    for i in range(8): a(f"v_mov_b32 v{i}, v{8+i}")
    a(f"s_lshl_b32 s76, s29, 11\ns_add_u32 s77, s76, {L_MEM}\ns_mov_b32 s78, {f32(CEXP)}\ns_lshl_b32 s79, s29, 6")
    a(f"s_lshr_b32 s38, s29, 1\ns_lshl_b32 s38, s38, 7\ns_and_b32 s94, s29, 1\ns_add_u32 s38, s38, s94\ns_lshl_b32 s38, s38, 5\ns_add_u32 s38, s38, {L_O}\ns_mov_b32 s94, 100000\nv_and_b32 v{OX}, 0x3df, v{L16}\nv_add_u32 v{OX}, s38, v{OX}\ns_not_b64 s[14:15], s[12:13]\ns_mov_b32 s101, 0\ns_mov_b32 s39, 0")
    a("s_lshr_b32 s37, s37, 16\ns_cmp_lg_u32 s37, 0\ns_cbranch_scc1 L_slow_entry")
    loop(a, "f", "", ts, merged, nsteps)
    a.label("L_slow_entry")
    loop(a, "s", " sc1", False, merged, nsteps)


def loop(a, tag, sc, ts, merged, nsteps):
    def T(i):
        if ts and i in ts: a(f"s_memtime s[{TSR(i)}:{TSR(i)+1}]" if 'w' not in ts else f"s_memrealtime s[{TSR(i)}:{TSR(i)+1}]")
        if ts and i == 7 and 'rt' in ts: a("s_memrealtime s[92:93]")
    e = Em(a)
    MB = 28
    def kmrd(): return [f"v_add_u32 v24, s79, v{QKR}", f"ds_read_b128 {vr(SX,4)}, v24 offset:{KOFF}"]
    def preA():
        o = [f"v_add_u32 v{MB}, s77, v{L16}", f"v_add_u32 v26, s73, v{L16}"] + kmrd()
        o += [f"ds_read_b128 {vr(KXR+4*i,4)}, v{L16} offset:{(i>>1)*4096+(i&1)*1024}" for i in range(8)]
        o += [f"ds_read_b128 {vr(VX+4*t,4)}, v26 offset:{2048+t*1024}" for t in range(2)]
        for g in range(4): o += wrd(SEQ[g])
        for i in range(4): o.append(f"v_mov_b32 v{SX+4+i}, v{AV+i}")
        for i in range(8): o.append(f"v_mov_b32 v{AV+i}, 0")
        for j in (1, 2, 3): o.append(f"v_xor_b32 v{MB+j}, {j*2048}, v{MB}")
        return o + ["v_mov_b32 v27, s101", "s_waitcnt lgkmcnt(0)", "s_barrier"]
    def preB(chk=True): return [f"v_mov_b32 v{AK+4+i}, -1" for i in range(4)] + [f"ds_write_b128 v{OX}, {vr(AK+4,4)}"] + [f"v_mov_b32 v{AQ+i}, 0" for i in range(16)] + (merged["wait_proj_loop"](tag) if merged and chk else [])
    def add(d, g, l): d.setdefault(g, []).extend(l)
    for x in preA() + preB(False): a(x)
    a(f"s_mov_b64 s[56:57], 0\ns_branch L{tag}_ent")
    dw = f"L{tag}_ent:\nds_write_b128 v{MB}, v[0:3]\nds_write_b128 v{MB}, v[4:7] offset:1024\n"
    c1 = "v_cmp_eq_u32 s[58:59], -1, v0\nv_cmp_eq_u32 s[62:63], -1, v4\n"; c2 = c1.replace("v0", "v24").replace("v4\n", "v26\n")
    mx = "v_max3_u32 v24, v0, v1, v2\nv_max3_u32 v26, v4, v5, v6\nv_max_u32 v24, v24, v3\nv_max_u32 v26, v26, v7\n"
    P2V = int(os.environ.get('P2V', 0))
    P2C = [c1 + f"L{tag}_ent:", c1 + dw, mx + dw + c2, mx + c2 + dw, "v_max_u32 v24, v0, v3\nv_max_u32 v26, v4, v7\n" + c2 + dw][P2V]
    a.label(f"L{tag}_p2")
    a(f"""s_mov_b64 exec, s[58:59]
    buffer_load_dwordx4 v[0:3], v{L16}, s[4:7], s69 offen sc1
    s_mov_b64 exec, s[62:63]
    buffer_load_dwordx4 v[4:7], v{L16}, s[4:7], s69 offen offset:1024 sc1
    s_mov_b64 exec, -1
    s_sub_u32 s75, s75, 1
    s_cselect_b64 s[56:57], 0, -1
    s_waitcnt vmcnt({PV2})
    {P2C}
    s_or_b64 vcc, s[58:59], s[62:63]
    s_and_b64 vcc, vcc, s[56:57]
    s_cbranch_vccnz L{tag}_p2""")
    a.label(f"L{tag}_body")
    T(0)
    def sm(k):
        mat, sg, t = k; acc = (AQ, AK, AV)[mat] + 4*t
        return f"v_smfmac_f32_16x16x64_bf16 {vr(acc,4)}, {vr(A0+4*sg,4)}, {wreg(k)}, v{IDX}"
    def mf(d, x, y, c): return f"v_mfma_f32_16x16x32_bf16 {vr(d,4)}, {vr(x,4)}, {vr(y,4)}, {c}"
    def mf16(d, x, y, c): return f"v_mfma_f32_16x16x16_bf16 {vr(d,4)}, {vr(x,2)}, {vr(y,2)}, {c}"
    KF = [KXR, KXR+4, KXR+16, KXR+20]
    SM, HALF, MX, T1, ONE, LA, OA, PK = AK, AK+4, AK+6, AK+7, 16, 20, 24, AK
    DD = [0, 4, AQ, AQ+4]
    main = [sm(k) for k in SEQ[:42]]
    main += [mf(SX+4*Tt, KXR+16*Tt+4*ks, QF+4*ks, "0" if ks == 0 else vr(SX+4*Tt, 4)) for ks in range(4) for Tt in (0, 1)]
    main += [sm(k) for k in SEQ[42:]]
    main += [mf(SM, KF[ks], QF+4*ks, "0" if ks == 0 else vr(SM, 4)) for ks in range(4)]
    rdA = [f"ds_read_b128 {vr(A0+4*sg,4)}, v{MB+(sg>>1)} offset:{(sg&1)*1024}" for sg in range(2, 8)]
    dm = dma()
    X = {} if P2V else {0: dw.split('\n')[1:3]}
    V = {}
    add(X, PB1, ["s_waitcnt lgkmcnt(0)", "s_barrier"] + rdA[:2]); add(X, PB1+1, rdA[2:4]); add(X, PB1+2, rdA[4:6])
    vm = dm[:4] + (merged["flagld"] if merged else []) + [f"buffer_store_dwordx4 {vr(SX+4*i,4)}, v{L16}, s[4:7], s{67+i} offen sc1" for i in (0, 1)]
    for g, x in zip(PS, vm): X[g] = [x] + X.get(g, []) if g == PB1 else X.get(g, []) + [x]
    add(X, 22, dm[4:]); add(X, 30, [f"s_add_u32 s67, s67, {32*4096}", f"s_add_u32 s68, s68, {32*4096}"])
    add(X, PW, [f"s_waitcnt vmcnt({8 if merged else 6})"])
    if merged: add(X, PB1+1, merged["flag"](tag)); assert PS[4] <= PB1
    for k, (r, g) in STG.items():
        if g is not None: add(X, g, wrd(k)[:1]); add(X, g+1, wrd(k)[1:])
    for i in range(8): add(V, (list(range(PW, 25)) + [47, 48, 49, 45, 47, 48, 49, 45])[i], [f"v_mov_b32 v{i}, 0"])
    def hsum(acc): return [f"v_add_f32 v{acc+i}, v{acc+i}, v{acc+i+2}" for i in (0, 1, 4, 5)] + [f"v_cvt_pk_bf16_f32 v{acc+i}, v{acc+i}, v{acc+4+i}" for i in (0, 1)]
    def hwr(acc, off): return [f"ds_write2_b32 v{QKW}, v{acc}, v{acc+1} offset0:{off//4} offset1:{(off+QSTR)//4}"]
    for i, x in enumerate(hsum(AQ)): add(V, 25+i, [x])
    add(X, 31, hwr(AQ, 0))
    rq = [f"ds_read_b128 {vr(QF+4*ks,4)}, v{QKR} offset:{ks*64}" for ks in range(4)]
    add(X, PB2, ["s_waitcnt lgkmcnt(0)", "s_barrier"] + rq[:2]); add(X, PB2+1, rq[2:])
    for i in range(8): add(V, (31, 32, 33, 34, 35, 43, 43, 46)[i], [f"v_mov_b32 v{AQ+7-i}, 0"])
    for i, x in enumerate(hsum(AK)): add(V, 36+i, [x])
    add(X, 42, hwr(AK, KOFF))
    rk = [f"ds_read_b128 {vr(KF[ks],4)}, v{T1} offset:{KOFF+ks*64}" for ks in range(4)]
    add(X, PB3, ["s_waitcnt lgkmcnt(0)", "s_barrier"] + rk[:2]); add(X, PB3+1, rk[2:])
    add(V, 42, [f"v_xor_b32 v{T1}, {QX4}, v{QKR}", f"v_cndmask_b32 v{T1}, v{QKR}, v{T1}, s[12:13]"])
    for i in range(4): add(V, (44, 44, 46, 50)[i], [f"v_mov_b32 v{ONE+i}, 0x3f803f80"])
    for i in range(4): add(V, 51+i, [f"v_cndmask_b32 v{SX+i}, v{SX+i}, v{SX+4+i}, s[12:13]"])
    cv = [f"v_cvt_pk_bf16_f32 v{AV+i}, v{AV+2*i}, v{AV+2*i+1}" for i in range(4)]
    add(V, 55, [f"v_max3_f32 v{MX}, v{SX}, v{SX+1}, v{SX+2}"]); add(V, 56, [f"v_max_f32 v{MX}, v{MX}, v{SX+3}", cv[0]])
    add(V, 57, [f"v_max_f32_dpp v{MX}, v{MX}, v{MX} quad_perm:[2,3,0,1] row_mask:0xf bank_mask:0xf", f"v_max_f32_dpp v{T1}, v{MX}, v{MX} quad_perm:[2,3,0,1] row_mask:0xf bank_mask:0xf"][::-1])
    add(V, 58, [cv[1], f"v_permlane32_swap_b32 v{MX}, v{T1}"])
    add(V, 59, cv[2:] + [f"v_max_f32 v{MX}, v{MX}, v{T1}"] + [f"v_mov_b32 v{HALF+i}, 0x3f003f00" for i in (0, 1)] + [f"s_cmp_eq_u32 s64, {nsteps-1}", f"s_cbranch_scc1 L{tag}_end", "s_nop 0"])
    e.gaps(main, X, V, {23: lambda: T(1), 35: lambda: T(2), 49: lambda: T(3)})
    PM = SM + 2
    fm = lambda r: f"v_fma_f32 v{r}, v{r}, s78, -v{T1}"
    ex = lambda r: f"v_exp_f32 v{r}, v{r}"
    dp = lambda d, s, q: f"v_mov_b32_dpp v{d}, v{s} quad_perm:[{q},{q+1},{q},{q+1}] row_mask:0xf bank_mask:0xf"
    e(f"""v_max3_f32 v{MX}, v{MX}, v{SM}, v{SM+1}
    v_max3_f32 v{T1}, v{MX}, v{SM+2}, v{SM+3}
    v_max3_f32 v{MX}, v{MX}, v{SM+2}, v{SM+3}
    s_nop 1
    v_permlane16_swap_b32 v{MX}, v{T1}
    v_max_f32 v{MX}, v{MX}, v{T1}
    v_mul_f32 v{T1}, s78, v{MX}""")
    for x in [fm(SM), fm(SM+1), ex(SM), ex(SM+1), fm(SX), fm(SX+1), f"v_cvt_pk_bf16_f32 v{PM}, v{SM}, v{SM+1}", f"v_cvt_pk_bf16_f32 v{PM+1}, v{SM}, v{SM+1}",
              fm(SX+2), fm(SX+3), mf16(LA, HALF, PM, "0"), ex(SX), mf16(OA, AV, PM, "0"), ex(SX+1), mf16(OA+4, AV+2, PM, "0"), ex(SX+2), ex(SX+3),
              f"v_cvt_pk_bf16_f32 v{SX+4}, v{SX}, v{SX+1}", f"v_cvt_pk_bf16_f32 v{SX+5}, v{SX+2}, v{SX+3}", "s_nop 0",
              dp(SX, SX+4, 0), dp(SX+2, SX+4, 2), dp(SX+1, SX+5, 0), dp(SX+3, SX+5, 2), "s_nop 1"]: e(x)
    T(4)
    XO = QF + 12
    e(mf(LA, ONE, SX, vr(LA, 4))); e(f"v_xor_b32 v{XO+1}, 32, v{OX}\nv_xor_b32 v{XO+2}, 4096, v{OX}")
    e(mf(OA, VX, SX, vr(OA, 4))); e(f"v_xor_b32 v{XO+3}, 4128, v{OX}"); e(mf(OA+4, VX+4, SX, vr(OA+4, 4)))
    e(f"v_rcp_f32 v{LA}, v{LA}\ns_nop 2")
    for i in range(8): e(f"v_mul_f32 v{OA+i}, v{OA+i}, v{LA}")
    for i in range(4): e(f"v_cvt_pk_bf16_f32 v{OA+i}, v{OA+i}, v{OA+4+i}")
    e(f"s_mov_b64 exec, s[14:15]\nds_write_b128 v{OX}, {vr(OA,4)}\ns_mov_b64 exec, -1")
    e(f"s_waitcnt {'' if LW else f'vmcnt({3 if merged else 2}) '}lgkmcnt(1)\ns_barrier\nL{tag}_wo:")
    T(5)
    OF = [OA, QF, QF+4, QF+8]
    order = [0, 1, 2, 3, 4, 5, 8, 9, 12, 13, 6, 7, 10, 14, 11, 15]
    main = [f"v_smfmac_f32_16x16x64_bf16 {vr(DD[op&3],4)}, {vr(OF[op>>2],4)}, {wreg((3, op>>1, op&1))}, v{IDX}" for op in order]
    X = {PB4: [f"ds_read_b128 {vr(OF[j],4)}, v{XO+j}" for j in (1, 2, 3)],
         13: ["s_add_u32 s37, s72, 0x8000", f"s_cbranch_vccnz L{tag}_redo", f"L{tag}_cont:"], 14: [f"buffer_store_dwordx4 {vr(PK,4)}, v{INS}, s[4:7], s72 offen{sc}"]}
    def pk(u, dst): return [f"v_cvt_pk_bf16_f32 v{dst+2*aa+i}, v{DD[2*u+aa]+2*i}, v{DD[2*u+aa]+2*i+1}" for aa in (0, 1) for i in (0, 1)]
    tagop = lambda r: f"v_and_or_b32 v{r}, v{r}, -2, s39"
    p0 = pk(0, PK); p1 = pk(1, PK+4)
    V = {10: p0[:1], 11: [tagop(PK), p0[1]], 12: p0[2:3], 13: p0[3:], 15: [p1[0], tagop(PK+4), p1[1], "s_nop 2", p1[2], p1[3]]}
    il = [f"v_and_b32 v17, 0x330, v{L16}", f"v_and_b32 v18, 0x30, v{L16}", "v_lshl_add_u32 v17, v18, 1, v17", "v_add_u32 v17, v18, v17", f"v_bfe_u32 v18, v{L16}, 6, 2",
          f"v_lshl_add_u32 v{INL}, v18, 4, v17"]
    ck = [f"v_max3_u32 v17, v{QF}, v{QF+1}, v{QF+2}"] + [f"v_max3_u32 v17, v17, v{QF+3+2*i}, v{QF+4+2*i}" for i in range(4)] + [f"v_max_u32 v17, v17, v{QF+11}", "v_cmp_eq_u32 vcc, -1, v17"]
    for i, x in enumerate(ck): V.setdefault((4, 6, 7, 8, 9, 9, 10)[i], []).append(x)
    X[12] = ["s_add_u32 s58, s72, s74", f"s_mov_b32 s75, {SPIN}"]
    if merged and not LW: V[5] = [f"v_readfirstlane_b32 s56, v{MST}"]
    e.gaps(main, X, V)
    a(f"buffer_store_dwordx4 {vr(PK+4,4)}, v{INS}, s[4:7], s37 offen{sc}")
    T(6)
    D0, D1, t0, t1, t2, t3 = AK, AK+4, AQ, AQ+1, AQ+2, AQ+3
    pr = ["s_mov_b64 s[60:61], -1", "s_mov_b64 s[62:63], -1", "v_mov_b32 v4, 0x3f80", "v_mov_b32 v5, 0x3f800000", "v_cndmask_b32 v4, v4, v5, s[54:55]"]
    pr += [f"v_cndmask_b32 v{i}, 0, v4, s[{46+2*i}:{47+2*i}]" for i in range(4)]
    if LW: pr += [f"s_waitcnt vmcnt({5 if merged else 4})", "s_barrier"] + ([f"v_readfirstlane_b32 s56, v{MST}"] if merged else [])
    pr += f"""v_mov_b32 v{t3}, -1
    v_bfe_u32 v{t0}, v{L16}, 8, 1
    v_and_b32 v{MST}, 0x20, v{L16}
    v_lshl_add_u32 v{MST}, v{t0}, 4, v{MST}
    v_bfe_u32 v{t0}, v{L16}, 4, 1
    v_lshl_add_u32 v{MST}, v{t0}, 3, v{MST}
    v_bfe_u32 v{t0}, v{L16}, 9, 1
    v_lshl_add_u32 v{MST}, v{t0}, 2, v{MST}
    s_mov_b32 s101, s64
    s_add_u32 s64, s64, 1
    s_and_b32 s37, s64, 3
    s_lshl_b32 s37, s37, 13
    s_add_u32 s70, s37, {hex(WS_MEMF)}
    s_add_u32 s69, s70, s76
    s_add_u32 s70, s70, s100
    s_xor_b32 s71, s70, 0x4000""".split("\n")
    if merged: pr += merged["upd"].split("\n")
    pa = preA(); pr = [x.strip().replace("v17", f"v{t0}").replace("v18", f"v{t1}") for x in pr]
    dsr = [x for x in pa if x.startswith("ds_")]; oth = pr + [x for x in pa[3:-2] if not x.startswith("ds_")]
    pr = pa[:3]
    while dsr or oth:
        pr += dsr[:CH[0]] + oth[:CH[1]]; dsr = dsr[CH[0]:]; oth = oth[CH[1]:]
    pr += pa[-2:]
    assert not LW
    for x in pr[:PD1]: a(x)
    a(f"""buffer_load_dwordx4 {vr(D0,4)}, v{L16}, s[4:7], s58 offen sc1
    buffer_load_dwordx4 {vr(D1,4)}, v{L16}, s[4:7], s58 offen offset:1024 sc1""")
    for x in pr[PD1:]: a(x)
    for i in range(PD4): a("s_nop 15")
    if PV1 == 4:
        a(f"buffer_load_dwordx4 {vr(D0,4)}, v{L16}, s[4:7], s58 offen sc1\nbuffer_load_dwordx4 {vr(D1,4)}, v{L16}, s[4:7], s58 offen offset:1024 sc1\ns_nop 15\ns_nop 7")
    if not PV1: a(f"s_branch L{tag}_p1w")
    a.label(f"L{tag}_p1")
    a(f"""s_mov_b64 exec, s[60:61]
    buffer_load_dwordx4 {vr(D0,4)}, v{L16}, s[4:7], s58 offen sc1
    s_mov_b64 exec, s[62:63]
    buffer_load_dwordx4 {vr(D1,4)}, v{L16}, s[4:7], s58 offen offset:1024 sc1
    s_mov_b64 exec, -1
    L{tag}_p1w:
    s_sub_u32 s75, s75, 1
    s_cselect_b64 s[56:57], 0, -1
    s_waitcnt vmcnt({PV1})
    v_and_b32 v{t0}, 1, v{D0}
    v_and_b32 v{t1}, 1, v{D1}
    v_mfma_f32_16x16x32_bf16 v[4:7], v[0:3], {vr(D0,4)}, 0
    v_cmp_ne_u32 s[60:61], s39, v{t0}
    v_cmp_ne_u32 s[62:63], s39, v{t1}
    v_mfma_f32_16x16x32_bf16 v[4:7], v[0:3], {vr(D1,4)}, v[4:7]
    s_or_b64 vcc, s[60:61], s[62:63]
    s_and_b64 vcc, vcc, s[56:57]
    s_cbranch_vccnz L{tag}_p1
    s_nop 4
    v_add_f32_dpp v4, v4, v4 row_ror:4 row_mask:0xf bank_mask:0xf
    v_add_f32_dpp v5, v5, v5 row_ror:4 row_mask:0xf bank_mask:0xf
    s_nop 0
    v_add_f32_dpp v4, v4, v4 row_ror:8 row_mask:0xf bank_mask:0xf
    v_add_f32_dpp v5, v5, v5 row_ror:8 row_mask:0xf bank_mask:0xf
    s_mov_b64 exec, s[44:45]
    v_cvt_pk_bf16_f32 v{t2}, v4, v5
    buffer_store_dword v{t2}, v{MST}, s[4:7], s70 offen{sc}
    buffer_store_dword v{t3}, v{MST}, s[4:7], s71 offen{sc}
    s_mov_b64 exec, -1
    s_xor_b32 s72, s72, 0x40000
    s_lshr_b32 s39, s64, 1
    s_and_b32 s39, s39, 1
    s_mov_b32 s75, {SPIN}""")
    T(7)
    if PV1: a("s_waitcnt vmcnt(2)")
    if ts:
        a("s_waitcnt lgkmcnt(0)\ns_mov_b64 exec, 1")
        for i in range(8): a(f"v_mov_b32 v{AK+i}, s{TSR(i)}")
        a(f"s_lshl_b32 s37, s28, 2\ns_add_u32 s37, s37, s29\ns_lshl_b32 s37, s37, 6\ns_add_u32 s37, s37, s64\ns_lshl_b32 s37, s37, 5\ns_add_u32 s37, s37, {hex(WS_TS)}")
        a(f"buffer_store_dwordx4 {vr(AK,4)}, off, s[4:7], s37\nbuffer_store_dwordx4 {vr(AK+4,4)}, off, s[4:7], s37 offset:16\ns_mov_b64 exec, -1\ns_nop 1")
    a("s_mov_b64 s[58:59], -1\ns_mov_b64 s[62:63], -1")
    for x in preB(): a(x)
    for i in range(PD2 - 1): a("s_nop 15")
    if PV2: a(f"""buffer_load_dwordx4 v[0:3], v{L16}, s[4:7], s69 offen sc1
    buffer_load_dwordx4 v[4:7], v{L16}, s[4:7], s69 offen offset:1024 sc1""")
    for i in range(PD3): a("s_nop 15")
    if PV2 == 4:
        a(f"buffer_load_dwordx4 v[0:3], v{L16}, s[4:7], s69 offen sc1\nbuffer_load_dwordx4 v[4:7], v{L16}, s[4:7], s69 offen offset:1024 sc1")
        for i in range(PD3): a("s_nop 15")
    a(f"s_branch L{tag}_p2")
    a.label(f"L{tag}_redo")
    a(f"s_sub_u32 s94, s94, 1\ns_cbranch_scc1 L{tag}_cont\ns_nop 15")
    for d in DD:
        for i in range(4): a(f"v_mov_b32 v{d+i}, 0")
    if ts: a("s_mov_b64 exec, 1\nv_mov_b32 v17, 1\nbuffer_atomic_add v17, off, s[8:11], 0 offset:44\ns_mov_b64 exec, -1")
    a(f"s_nop 1\ns_branch L{tag}_wo")
    a.label(f"L{tag}_end")
    for x in kmrd(): a(x)
    a(f"buffer_store_dwordx4 {vr(AV,4)}, v{L16}, s[4:7], s68 offen sc1\ns_waitcnt lgkmcnt(0)")
    a(f"buffer_store_dwordx4 {vr(SX,4)}, v{L16}, s[4:7], s67 offen sc1")
    a("s_waitcnt vmcnt(0)")
    if CYC: a(f"s_memtime s[86:87]\ns_waitcnt lgkmcnt(0)\ns_sub_u32 s86, s86, s84\nv_mov_b32 v8, s86\ns_lshl_b32 s37, s28, 2\ns_mov_b64 exec, 1\nbuffer_store_dword v8, off, s[8:11], s37 offset:128\ns_mov_b64 exec, -1")
    if merged: merged["final"](a, tag)
    else: a(f"s_memrealtime s[86:87]\ns_waitcnt lgkmcnt(0)\ns_sub_u32 s86, s86, s84\nv_mov_b32 v8, s86\ns_lshl_b32 s37, s28, 2\ns_mov_b64 exec, 1\nbuffer_store_dword v8, off, s[8:11], s37 offset:128\ns_endpgm")
```

```python
import sys
from common import *
from chain import *
from proj import *
from attn import *
from conv import *
ts = eval(sys.argv[2]) if len(sys.argv) > 2 else False
a = Asm()
roles(a, "L_work", "L_exit")
UPD = """s_and_b32 s99, s56, 0xff
    s_bfe_u32 s97, s56, 0x80010
    s_min_u32 s99, s99, s97
    s_bfe_u32 s97, s56, 0x80008
    s_lshr_b32 s56, s56, 24
    s_min_u32 s97, s97, s56
    s_lshl_b32 s99, s99, 1
    s_lshl1_add_u32 s97, s97, 1
    s_min_u32 s99, s99, s97"""
def wait_proj(a, seg):
    poll(a, f"L_ch_wp{seg}", f"buffer_load_dword v8, off, s[4:7], s95 sc1", UPD + f"\ns_cmp_gt_u32 s99, {seg}", 1)
def wait_proj_loop(tag):
    return ["s_add_u32 s96, s64, 1", "s_min_u32 s96, s96, 63", "s_cmp_le_u32 s99, s96", f"s_cbranch_scc1 L{tag}_wp", f"L{tag}_wpr:"]
FLD = f"buffer_load_dword v{MST}, off, s[4:7], s95 sc1"
def final(a, tag):
    a(f"""s_barrier
    s_cmp_lg_u32 s29, 0
    s_cbranch_scc1 L{tag}_fin
    s_mov_b64 exec, 1
    v_mov_b32 v8, 64
    buffer_store_byte v8, off, s[4:7], s98 sc1
    s_waitcnt vmcnt(0)""")
    a.label(f"L{tag}_fin")
    a("s_endpgm")
    a.label(f"L{tag}_wp")
    a(f"s_mov_b32 s57, {SPINW}")
    a.label(f"L{tag}_wp2")
    a(f"{FLD}\ns_waitcnt vmcnt(0)\nv_readfirstlane_b32 s56, v{MST}")
    a(UPD + "\ns_cmp_gt_u32 s99, s96")
    a(f"s_cbranch_scc1 L{tag}_wpr\ns_sub_u32 s57, s57, 1\ns_cbranch_scc0 L{tag}_wp2\ns_branch L{tag}_wpr")
def flag(tag):
    return ["s_mov_b64 exec, 1", f"buffer_store_byte v27, off, s[4:7], s98 sc1", "s_mov_b64 exec, -1"]
chain(a, ts=ts, merged=dict(wait_proj=wait_proj, wait_proj_loop=wait_proj_loop, final=final, flag=flag, flagld=[FLD], upd=UPD))
a.label("L_work")
a("s_sub_u32 s40, s30, 32\ns_cmp_ge_u32 s40, 192\ns_cbranch_scc1 L_second")
proj(a, "L_second")
a.label("L_second")
a("""s_sub_u32 s40, s30, 32
s_cmp_lt_u32 s40, 64
s_cbranch_scc1 L_oproj
s_sub_u32 s40, s40, 64
s_cmp_lt_u32 s40, 32
s_cbranch_scc1 L_attn
s_cmp_lt_u32 s40, 96
s_cbranch_scc1 L_exit
s_sub_u32 s40, s40, 96""")
conv(a)
a.label("L_oproj"); oproj(a)
a.label("L_attn"); attn(a)
if ts:
    a.lines = ["s_branch L_exts" if x == "s_endpgm" else x for x in a.lines]
    i = a.lines.index("L_second:"); a.lines.insert(i+1, "s_memrealtime s[100:101]")
    a.label("L_exts")
    srd(a, 4, "ws")
    a(f"""s_memrealtime s[20:21]
    v_readfirstlane_b32 s29, v255
    s_waitcnt lgkmcnt(0)
    s_mov_b64 exec, 1
    v_mov_b32 v8, s20
    v_mov_b32 v9, s100
    s_lshl_b32 s30, s30, 3
    s_add_u32 s30, s30, {hex(WS_TS+0x80000)}
    buffer_store_dwordx2 v[8:9], off, s[4:7], s30""")
a.label("L_exit"); a("s_endpgm")
for p in check(a.lines, "k"): print(p)
K = NAME + "_kernel"
txt = header(["; @launch grid=(256,1,1) block=(256,1,1) lds=163840"]) + kernel_text(K, a.text()) + '.section .rodata,"a"\n' + descriptor(K)
open(sys.argv[1], "w").write(txt)
print(len(txt), "bytes", len(a.lines), "lines")
```

```python
from common import *
from proj import *
from chain import f32
def attn(a, flags=True):
    lanes(a)
    a(f"""s_lshr_b32 s41, s40, 3
    s_and_b32 s42, s40, 7
    s_lshl_b32 s43, s42, 2
    s_add_u32 s43, s43, s29
    s_mov_b32 s44, s41
    s_lshl_b32 s50, s43, 7
    s_add_u32 s50, s50, {hex(WS_FL)}
    s_lshr_b32 s51, s40, 1
    s_lshl_b32 s51, s51, 7
    s_and_b32 s48, s40, 1
    s_add_u32 s51, s51, s48
    s_add_u32 s51, s51, {hex(WS_FL+0x2000)}
    s_mov_b32 s58, {f32(0.08838834764831845)}
    s_mov_b32 s59, {f32(1.4426950408889634)}
    s_mov_b32 s62, 0xffff0000
    v_lshlrev_b32 v5, 2, v3
    v_mov_b32 v7, 0xce6e6b28""")
    for i in range(4): a(f"v_add_u32 v6, {i}, v5\nv_cmp_le_u32 s[{64+2*i}:{65+2*i}], v6, v2")
    if flags: poll(a, "L_at_pd", f"buffer_load_dword v8, off, s[8:11], 0 offset:{D_PD*4} sc1", "s_cmp_ge_u32 s56, 192", 8)
    a.label("L_at_loop")
    Q, K, KM, V, VM = 16, 48, 80, 96, 128
    a(f"""s_lshl_b32 s45, s44, 5
    s_add_u32 s45, s45, s43
    s_lshl_b32 s46, s45, 13
    s_lshl_b32 s47, s45, 12""")
    for base, ws in ((Q, WS_QX), (K, WS_KX), (V, WS_VX)):
        for hh in range(2):
            a(f"s_add_u32 s48, s46, {hex(ws + hh*4096)}")
            for i in range(4): a(f"buffer_load_dwordx4 {vr(base+hh*16+i*4,4)}, v4, s[4:7], s48 offen offset:{i*1024} sc1")
    if flags: poll(a, "L_at_cp", f"buffer_load_ubyte v8, off, s[4:7], s50 sc1", "s_cmp_gt_u32 s56, s44", 1)
    for base, ws in ((KM, WS_KM), (VM, WS_VM)):
        a(f"s_add_u32 s48, s47, {hex(ws)}")
        for i in range(4): a(f"buffer_load_dwordx4 {vr(base+i*4,4)}, v4, s[4:7], s48 offen offset:{i*1024} sc1")
    S = 144
    def sreg(Tq, tl): return S + (Tq*3+tl)*4
    a("s_waitcnt vmcnt(8)")
    for ks in range(4):
        for Tq, tl in ((0, 0), (1, 0), (1, 1)):
            d = vr(sreg(Tq, tl), 4)
            a(f"v_mfma_f32_16x16x32_bf16 {d}, {vr(K+tl*16+ks*4,4)}, {vr(Q+Tq*16+ks*4,4)}, {'0' if ks == 0 else d}")
    a("s_waitcnt vmcnt(4)")
    for ks in range(4):
        for Tq in range(2):
            d = vr(sreg(Tq, 2), 4)
            a(f"v_mfma_f32_16x16x32_bf16 {d}, {vr(KM+ks*4,4)}, {vr(Q+Tq*16+ks*4,4)}, {'0' if ks == 0 else d}")
    a("s_nop 7")
    P = 168
    for Tq in range(2):
        tiles = (0, 2) if Tq == 0 else (0, 1, 2)
        rr = [sreg(Tq, tl) + i for tl in tiles for i in range(4)]
        def rnd():
            for x in rr[::2]: a(f"v_cvt_pk_bf16_f32 v{x+1}, v{x}, v{x+1}\nv_lshlrev_b32 v{x}, 16, v{x+1}\nv_and_b32 v{x+1}, s62, v{x+1}")
        rnd()
        for x in rr: a(f"v_mul_f32 v{x}, s58, v{x}")
        rnd()
        for i in range(4): a(f"v_cndmask_b32 v{sreg(Tq,Tq)+i}, v7, v{sreg(Tq,Tq)+i}, s[{64+2*i}:{65+2*i}]")
        a(f"v_max_f32 v9, v{rr[0]}, v{rr[1]}")
        for x in rr[2::2]: a(f"v_max3_f32 v9, v9, v{x}, v{x+1}")
        def xl(op):
            for sw in (16, 32): a(f"v_mov_b32 v10, v9\ns_nop 1\nv_permlane{sw}_swap_b32 v9, v10\ns_nop 1\n{op} v9, v9, v10")
        xl("v_max_f32")
        for x in rr: a(f"v_sub_f32 v{x}, v{x}, v9")
        for x in rr: a(f"v_mul_f32 v{x}, s59, v{x}")
        for x in rr: a(f"v_exp_f32 v{x}, v{x}")
        m = rr[-4:]
        a(f"v_add_f32 v9, v{m[0]}, v{m[1]}\nv_add_f32 v9, v9, v{m[2]}\nv_add_f32 v9, v9, v{m[3]}\nv_mul_f32 v9, 0.5, v9")
        for x in rr[:-4]: a(f"v_add_f32 v9, v9, v{x}")
        xl("v_add_f32")
        a("v_rcp_f32 v9, v9\ns_nop 0")
        for x in rr: a(f"v_mul_f32 v{x}, v{x}, v9")
        for tl in range(3):
            for i in range(2):
                d = P + Tq*8 + tl*2 + i
                if tl in tiles: a(f"v_cvt_pk_bf16_f32 v{d}, v{sreg(Tq,tl)+2*i}, v{sreg(Tq,tl)+2*i+1}")
                else: a(f"v_mov_b32 v{d}, 0")
    a(f"""s_lshl_b32 s48, s44, 18
    s_lshl_b32 s49, s43, 12
    s_add_u32 s48, s48, s49
    s_add_u32 s48, s48, {hex(WS_O)}
    s_add_u32 s49, s48, 0x20000
    s_waitcnt vmcnt(0)""")
    O = 184
    for Tq in range(2):
        for e in range(8): a(f"v_mfma_f32_16x16x32_bf16 {vr(O+Tq*32+e*4,4)}, {vr(V+e*4,4)}, {vr(P+Tq*8,4)}, 0")
        for e in range(8): a(f"v_mfma_f32_16x16x16_bf16 {vr(O+Tq*32+e*4,4)}, {vr(VM+e*2,2)}, {vr(P+Tq*8+4,2)}, {vr(O+Tq*32+e*4,4)}")
    a("s_nop 7")
    for Tq in range(2):
        for w in range(4):
            b = O+Tq*32+w*8
            for i in range(4): a(f"v_cvt_pk_bf16_f32 v{b+i}, v{b+i}, v{b+4+i}")
            a(f"buffer_store_dwordx4 {vr(b,4)}, v4, s[4:7], s{48+Tq} offen offset:{w*1024} sc1")
    a("s_add_u32 s44, s44, 4\ns_waitcnt vmcnt(0)")
    if flags:
        a(f"""s_barrier
        s_cmp_lg_u32 s29, 0
        s_cbranch_scc1 L_at_nf
        s_lshr_b32 s48, s44, 2
        s_mov_b64 exec, 1
        v_mov_b32 v8, s48
        buffer_store_byte v8, off, s[4:7], s51 sc1
        s_mov_b64 exec, -1""")
        a.label("L_at_nf")
    a("s_cmp_lt_u32 s44, 64\ns_cbranch_scc1 L_at_loop\ns_waitcnt vmcnt(0)\ns_endpgm")

def oproj(a, flags=True):
    lanes(a)
    srd(a, 12, "Wo"); srd(a, 16, "out")
    a("""s_lshr_b32 s44, s40, 4
    s_and_b32 s42, s40, 15
    s_mov_b32 s52, 0x00ff00ff
    s_bitcmp1_b32 s44, 0
    s_cselect_b32 s52, 0xff00ff00, s52
    s_mov_b32 s53, s52
    s_add_u32 s45, s44, 244
    s_cmp_ge_u32 s44, 8
    s_cselect_b32 s44, s45, s44
    v_lshlrev_b32 v6, 13, v3
    v_lshl_add_u32 v6, v2, 2, v6
    s_lshl_b32 s46, s29, 20
    s_lshl_b32 s47, s42, 6
    s_add_u32 s46, s46, s47
    v_lshlrev_b32 v5, 11, v2
    v_lshl_add_u32 v5, v3, 4, v5
    v_add_u32 v5, s47, v5
    s_waitcnt lgkmcnt(0)""")
    load_frags(a, 12, 6, 1024, 46, 32, lambda ks, t: ("a", (ks*2+t)*4))
    a("s_lshl_b32 s50, s29, 11\ns_mov_b32 s51, 0\ns_barrier")
    a.label("L_op_loop")
    a(f"""s_lshr_b32 s45, s44, 2
    s_lshr_b32 s54, s44, 1
    s_and_b32 s48, s45, 3
    s_lshl_b32 s48, s48, 2
    s_add_u32 s48, s48, s29
    s_lshl_b32 s48, s48, 7
    s_add_u32 s48, s48, {hex(WS_FL+0x2000)}
    s_lshr_b32 s49, s45, 2""")
    if flags: poll(a, "L_op_w", f"buffer_load_ushort v8, off, s[4:7], s48 sc1",
                   "s_and_b32 s58, s56, 0xff\ns_lshr_b32 s56, s56, 8\ns_min_u32 s56, s56, s58\ns_cmp_gt_u32 s56, s49", 1)
    a(f"s_mov_b64 exec, s[52:53]\ns_lshl_b32 s48, s54, 17\ns_lshl_b32 s49, s29, 15\ns_add_u32 s48, s48, s49\ns_add_u32 s48, s48, {hex(WS_O)}")
    for i in range(32):
        if i % 4 == 0 and i: a("s_add_u32 s48, s48, 4096")
        a(f"buffer_load_dwordx4 {vr(128+i*4,4)}, v4, s[4:7], s48 offen offset:{(i%4)*1024} sc1")
    for ks in range(32):
        a(f"s_waitcnt vmcnt({31-ks})")
        for t in range(2):
            d = vr(16+t*4, 4)
            a(f"v_mfma_f32_16x16x32_bf16 {d}, {ar((ks*2+t)*4,4)}, {vr(128+ks*4,4)}, {'0' if ks == 0 else d}")
    a("""v_add_u32 v7, s51, v4
    v_add_u32 v9, s50, v7
    s_xor_b32 s51, s51, 0x2000
    s_nop 5
    ds_write_b128 v9, v[16:19]
    ds_write_b128 v9, v[20:23] offset:1024
    s_waitcnt lgkmcnt(0)
    s_barrier
    s_cmp_lg_u32 s29, 0
    s_cbranch_scc1 L_op_next""")
    for w in range(1, 4):
        for t in range(2): a(f"ds_read_b128 {vr(16+w*8+t*4,4)}, v7 offset:{w*2048+t*1024}")
    a("s_waitcnt lgkmcnt(0)")
    for w in range(1, 4):
        for i in range(8): a(f"v_add_f32 v{16+i}, v{16+i}, v{16+w*8+i}")
    for i in range(4): a(f"v_cvt_pk_bf16_f32 v{48+i}, v{16+i}, v{20+i}")
    a("s_lshl_b32 s48, s54, 15\nbuffer_store_dwordx4 v[48:51], v5, s[16:19], s48 offen")
    a.label("L_op_next")
    a("s_mov_b64 exec, -1\ns_add_u32 s44, s44, 8\ns_cmp_lt_u32 s44, 252\ns_cbranch_scc1 L_op_loop\ns_waitcnt vmcnt(0)\ns_endpgm")
```

```python
import sys
from common import *
from chain import *
from proj import *
from attn import *
from conv import *
ts = eval(sys.argv[2]) if len(sys.argv) > 2 else False
a = Asm()
roles(a, "L_work", "L_exit")
UPD = """s_and_b32 s99, s56, 0xff
    s_bfe_u32 s97, s56, 0x80010
    s_min_u32 s99, s99, s97
    s_bfe_u32 s97, s56, 0x80008
    s_lshr_b32 s56, s56, 24
    s_min_u32 s97, s97, s56
    s_lshl_b32 s99, s99, 1
    s_lshl1_add_u32 s97, s97, 1
    s_min_u32 s99, s99, s97"""
def wait_proj(a, seg):
    poll(a, f"L_ch_wp{seg}", f"buffer_load_dword v8, off, s[4:7], s95 sc1", UPD + f"\ns_cmp_gt_u32 s99, {seg}", 1)
def wait_proj_loop(tag):
    return ["s_add_u32 s96, s64, 1", "s_min_u32 s96, s96, 63", "s_cmp_le_u32 s99, s96", f"s_cbranch_scc1 L{tag}_wp", f"L{tag}_wpr:"]
FLD = f"buffer_load_dword v{MST}, off, s[4:7], s95 sc1"
def final(a, tag):
    a(f"""s_barrier
    s_cmp_lg_u32 s29, 0
    s_cbranch_scc1 L{tag}_fin
    s_mov_b64 exec, 1
    v_mov_b32 v8, 64
    buffer_store_byte v8, off, s[4:7], s98 sc1
    s_waitcnt vmcnt(0)""")
    a.label(f"L{tag}_fin")
    a("s_endpgm")
    a.label(f"L{tag}_wp")
    a(f"s_mov_b32 s57, {SPINW}")
    a.label(f"L{tag}_wp2")
    a(f"{FLD}\ns_waitcnt vmcnt(0)\nv_readfirstlane_b32 s56, v{MST}")
    a(UPD + "\ns_cmp_gt_u32 s99, s96")
    a(f"s_cbranch_scc1 L{tag}_wpr\ns_sub_u32 s57, s57, 1\ns_cbranch_scc0 L{tag}_wp2\ns_branch L{tag}_wpr")
def flag(tag):
    return ["s_mov_b64 exec, 1", f"buffer_store_byte v27, off, s[4:7], s98 sc1", "s_mov_b64 exec, -1"]
chain(a, ts=ts, merged=dict(wait_proj=wait_proj, wait_proj_loop=wait_proj_loop, final=final, flag=flag, flagld=[FLD], upd=UPD))
a.label("L_work")
DL, DN = eval(os.environ.get("DL", "(224,4)"))
if DN: a(f"s_cmp_lt_u32 s30, {DL}\ns_cbranch_scc1 L_nodl\n" + "s_sleep 127\n"*DN + "L_nodl:")
a("s_sub_u32 s40, s30, 32\ns_cmp_ge_u32 s40, 192\ns_cbranch_scc1 L_second")
proj(a, "L_second")
a.label("L_second")
a("""s_sub_u32 s40, s30, 32
s_cmp_lt_u32 s40, 64
s_cbranch_scc1 L_oproj
s_sub_u32 s40, s40, 64
s_cmp_lt_u32 s40, 32
s_cbranch_scc1 L_attn
s_add_u32 s40, s40, 32
s_cmp_lt_u32 s40, 128
s_cbranch_scc1 L_oproj
s_sub_u32 s40, s40, 128""")
conv(a)
assert a.lines[-1] == "s_endpgm"; a.lines.pop()
a("s_sub_u32 s40, s30, 192\ns_cmp_ge_u32 s40, 32\ns_cbranch_scc1 L_attn\ns_sub_u32 s40, s30, 64")
a.label("L_oproj"); oproj(a)
a.label("L_attn"); attn(a)
if ts or os.environ.get("ENDTS"):
    a.lines = ["s_branch L_exts" if x == "s_endpgm" else x for x in a.lines]
    i = a.lines.index("L_second:"); a.lines.insert(a.lines.index("L_work:")+1, "s_memrealtime s[100:101]")
    a.label("L_exts")
    srd(a, 4, "ws")
    a(f"""s_memrealtime s[20:21]
    v_readfirstlane_b32 s29, v255
    s_waitcnt lgkmcnt(0)
    s_mov_b64 exec, 1
    v_mov_b32 v8, s20
    v_mov_b32 v9, s100
    s_lshl_b32 s30, s30, 3
    s_add_u32 s30, s30, {hex(WS_TS+0x80000)}
    buffer_store_dwordx2 v[8:9], off, s[4:7], s30""")
a.label("L_exit"); a("s_endpgm")
for p in check(a.lines, "k"): print(p)
K = NAME + "_kernel"
txt = header(["; @launch grid=(256,1,1) block=(256,1,1) lds=163840"]) + kernel_text(K, a.text()) + '.section .rodata,"a"\n' + descriptor(K)
open(sys.argv[1], "w").write(txt)
print(len(txt), "bytes", len(a.lines), "lines")
```

```python
from common import *
from proj import *
from chain import f32
import os
SL1, SL2 = eval(os.environ.get("SL", "(8,16)"))
def attn(a, flags=True):
    lanes(a)
    a(f"""s_lshr_b32 s41, s40, 3
    s_and_b32 s42, s40, 7
    s_lshl_b32 s43, s42, 2
    s_add_u32 s43, s43, s29
    s_mov_b32 s44, s41
    s_lshl_b32 s50, s43, 7
    s_add_u32 s50, s50, {hex(WS_FL)}
    s_lshr_b32 s51, s40, 1
    s_lshl_b32 s51, s51, 7
    s_and_b32 s48, s40, 1
    s_add_u32 s51, s51, s48
    s_add_u32 s51, s51, {hex(WS_FL+0x2000)}
    s_mov_b32 s58, {f32(0.08838834764831845)}
    s_mov_b32 s59, {f32(1.4426950408889634)}
    s_mov_b32 s62, 0xffff0000
    v_lshlrev_b32 v5, 2, v3
    v_mov_b32 v7, 0xce6e6b28""")
    for i in range(4): a(f"v_add_u32 v6, {i}, v5\nv_cmp_le_u32 s[{64+2*i}:{65+2*i}], v6, v2")
    a(f"""s_add_u32 s48, s44, 56
    s_lshl_b32 s48, s48, 18
    s_lshl_b32 s49, s43, 12
    s_add_u32 s48, s48, s49
    s_add_u32 s48, s48, {hex(WS_O)}
    s_add_u32 s49, s48, 0x20000""")
    for i in range(4): a(f"v_mov_b32 v{16+i}, -1")
    for Tq in range(2):
        for w in range(4): a(f"buffer_store_dwordx4 v[16:19], v4, s[4:7], s{48+Tq} offen offset:{w*1024} sc1")
    if flags: poll(a, "L_at_pd", f"buffer_load_dword v8, off, s[8:11], 0 offset:{D_PD*4} sc1", "s_cmp_ge_u32 s56, 192", 8)
    Q, K, KM, V, VM = 16, 48, 80, 96, 128
    def qkv():
        a(f"""s_lshl_b32 s45, s44, 5
        s_add_u32 s45, s45, s43
        s_lshl_b32 s46, s45, 13
        s_lshl_b32 s47, s45, 12""")
        for base, ws in ((Q, WS_QX), (K, WS_KX), (V, WS_VX)):
            for hh in range(2):
                a(f"s_add_u32 s48, s46, {hex(ws + hh*4096)}")
                for i in range(4): a(f"buffer_load_dwordx4 {vr(base+hh*16+i*4,4)}, v4, s[4:7], s48 offen offset:{i*1024} sc1")
    qkv()
    a("s_mov_b32 s56, 0")
    a.label("L_at_loop")
    S = 144
    def sreg(Tq, tl): return S + (Tq*3+tl)*4
    def kmld():
        for base, ws in ((KM, WS_KM), (VM, WS_VM)):
            a(f"s_add_u32 s48, s47, {hex(ws)}")
            for i in range(4): a(f"buffer_load_dwordx4 {vr(base+i*4,4)}, v4, s[4:7], s48 offen offset:{i*1024} sc1")
    def sx():
        for ks in range(4):
            for Tq, tl in ((0, 0), (1, 0), (1, 1)):
                d = vr(sreg(Tq, tl), 4)
                a(f"v_mfma_f32_16x16x32_bf16 {d}, {vr(K+tl*16+ks*4,4)}, {vr(Q+Tq*16+ks*4,4)}, {'0' if ks == 0 else d}")
    a("s_min_u32 s52, s44, 60\ns_cmp_eq_u32 s44, 61\ns_cselect_b32 s52, 59, s52\ns_cmp_gt_u32 s56, s52\ns_cbranch_scc0 L_at_slow")
    kmld(); a("s_waitcnt vmcnt(8)"); sx()
    a("s_cmp_ge_u32 s44, 61\ns_cselect_b32 s57, 100000, 0\ns_branch L_at_chk")
    a.label("L_at_slow")
    a("s_waitcnt vmcnt(0)"); sx()
    poll(a, "L_at_cp", f"buffer_load_ubyte v8, off, s[4:7], s50 sc1", "s_cmp_gt_u32 s56, s52", SL1)
    a(f"s_cmp_ge_u32 s44, 61\ns_cselect_b32 s57, 100000, 0")
    a.label("L_at_ld")
    kmld()
    a.label("L_at_chk")
    a("v_mov_b32 v9, 0")
    for i in range(8):
        b = KM + 4*i if i < 4 else VM + 4*(i-4)
        a(f"s_waitcnt vmcnt({7-i})\nv_max3_u32 v9, v9, v{b}, v{b+1}\nv_max3_u32 v9, v9, v{b+2}, v{b+3}")
    a("v_cmp_eq_u32 vcc, -1, v9\ns_cbranch_vccz L_at_go\ns_sub_u32 s57, s57, 1\ns_cbranch_scc0 L_at_ld")
    a.label("L_at_go")
    for ks in range(4):
        for Tq in range(2):
            d = vr(sreg(Tq, 2), 4)
            a(f"v_mfma_f32_16x16x32_bf16 {d}, {vr(KM+ks*4,4)}, {vr(Q+Tq*16+ks*4,4)}, {'0' if ks == 0 else d}")
    a("s_nop 7")
    P = 168
    for Tq in range(2):
        tiles = (0, 2) if Tq == 0 else (0, 1, 2)
        rr = [sreg(Tq, tl) + i for tl in tiles for i in range(4)]
        def rnd():
            for x in rr[::2]: a(f"v_cvt_pk_bf16_f32 v{x+1}, v{x}, v{x+1}\nv_lshlrev_b32 v{x}, 16, v{x+1}\nv_and_b32 v{x+1}, s62, v{x+1}")
        rnd()
        for x in rr: a(f"v_mul_f32 v{x}, s58, v{x}")
        rnd()
        for i in range(4): a(f"v_cndmask_b32 v{sreg(Tq,Tq)+i}, v7, v{sreg(Tq,Tq)+i}, s[{64+2*i}:{65+2*i}]")
        a(f"v_max_f32 v9, v{rr[0]}, v{rr[1]}")
        for x in rr[2::2]: a(f"v_max3_f32 v9, v9, v{x}, v{x+1}")
        def xl(op):
            for sw in (16, 32): a(f"v_mov_b32 v10, v9\ns_nop 1\nv_permlane{sw}_swap_b32 v9, v10\ns_nop 1\n{op} v9, v9, v10")
        xl("v_max_f32")
        for x in rr: a(f"v_sub_f32 v{x}, v{x}, v9")
        for x in rr: a(f"v_mul_f32 v{x}, s59, v{x}")
        for x in rr: a(f"v_exp_f32 v{x}, v{x}")
        m = rr[-4:]
        a(f"v_add_f32 v9, v{m[0]}, v{m[1]}\nv_add_f32 v9, v9, v{m[2]}\nv_add_f32 v9, v9, v{m[3]}\nv_mul_f32 v9, 0.5, v9")
        for x in rr[:-4]: a(f"v_add_f32 v9, v9, v{x}")
        xl("v_add_f32")
        a("v_rcp_f32 v9, v9\ns_nop 0")
        for x in rr: a(f"v_mul_f32 v{x}, v{x}, v9")
        for tl in range(3):
            for i in range(2):
                d = P + Tq*8 + tl*2 + i
                if tl in tiles: a(f"v_cvt_pk_bf16_f32 v{d}, v{sreg(Tq,tl)+2*i}, v{sreg(Tq,tl)+2*i+1}")
                else: a(f"v_mov_b32 v{d}, 0")
    a(f"""s_lshl_b32 s48, s44, 18
    s_lshl_b32 s49, s43, 12
    s_add_u32 s48, s48, s49
    s_add_u32 s48, s48, {hex(WS_O)}
    s_add_u32 s49, s48, 0x20000
    s_waitcnt vmcnt(0)""")
    O = 184
    for Tq in range(2):
        for e in range(8): a(f"v_mfma_f32_16x16x32_bf16 {vr(O+Tq*32+e*4,4)}, {vr(V+e*4,4)}, {vr(P+Tq*8,4)}, 0")
        for e in range(8): a(f"v_mfma_f32_16x16x16_bf16 {vr(O+Tq*32+e*4,4)}, {vr(VM+e*2,2)}, {vr(P+Tq*8+4,2)}, {vr(O+Tq*32+e*4,4)}")
    a("s_nop 7")
    for Tq in range(2):
        for w in range(4):
            b = O+Tq*32+w*8
            for i in range(4): a(f"v_cvt_pk_bf16_f32 v{b+i}, v{b+i}, v{b+4+i}")
            a(f"buffer_store_dwordx4 {vr(b,4)}, v4, s[4:7], s{48+Tq} offen offset:{w*1024} sc1")
    a("s_add_u32 s44, s44, 8\ns_cmp_lt_u32 s44, 64\ns_cbranch_scc1 L_at_nx\ns_waitcnt vmcnt(0)\ns_branch L_at_fl")
    a.label("L_at_nx")
    qkv()
    a("s_waitcnt vmcnt(24)")
    a.label("L_at_fl")
    if flags:
        a(f"""s_barrier
        s_cmp_lg_u32 s29, 0
        s_cbranch_scc1 L_at_nf
        s_lshr_b32 s48, s44, 3
        s_mov_b64 exec, 1
        v_mov_b32 v8, s48
        buffer_store_byte v8, off, s[4:7], s51 sc1
        s_mov_b64 exec, -1""")
        a.label("L_at_nf")
    a("s_cmp_lt_u32 s44, 64\ns_cbranch_scc1 L_at_loop\ns_waitcnt vmcnt(0)\ns_endpgm")

def oproj(a, flags=True):
    lanes(a)
    srd(a, 12, "Wo"); srd(a, 16, "out")
    a("""s_lshr_b32 s44, s40, 4
    s_and_b32 s42, s40, 15
    s_mov_b32 s64, 0x00ff00ff
    s_add_u32 s45, s44, 118
    s_cmp_ge_u32 s44, 8
    s_cselect_b32 s44, s45, s44
    s_cselect_b32 s64, 0xff00ff00, s64
    s_cselect_b32 s66, 128, 0
    s_mov_b32 s65, s64
    v_lshlrev_b32 v6, 13, v3
    v_lshl_add_u32 v6, v2, 2, v6
    s_lshl_b32 s46, s29, 20
    s_lshl_b32 s47, s42, 6
    s_add_u32 s46, s46, s47
    v_lshlrev_b32 v5, 11, v2
    v_lshl_add_u32 v5, v3, 4, v5
    v_add_u32 v5, s47, v5
    s_waitcnt lgkmcnt(0)""")
    load_frags(a, 12, 6, 1024, 46, 32, lambda ks, t: ("a", (ks*2+t)*4))
    a("s_lshl_b32 s50, s29, 11\ns_mov_b32 s51, 0\ns_mov_b32 s46, 0\ns_mov_b32 s47, 0\ns_add_u32 s48, s66, 3952\nv_lshlrev_b32 v10, 12, v1\nv_add_u32 v10, s48, v10\ns_barrier")
    a.label("L_op_loop")
    a(f"""s_lshr_b32 s45, s44, 1
    s_mov_b32 s54, s44
    s_cmp_ge_u32 s44, 126
    s_cselect_b64 s[52:53], s[64:65], -1
    s_and_b32 s48, s45, 7
    s_lshl_b32 s48, s48, 2
    s_add_u32 s48, s48, s29
    s_lshl_b32 s48, s48, 7
    s_add_u32 s48, s48, {hex(WS_FL+0x2000)}
    s_lshr_b32 s49, s45, 3
    s_cmp_ge_u32 s45, 62
    s_cselect_b32 s49, 6, s49
    s_cmp_gt_u32 s46, s49
    s_cbranch_scc1 L_op_sk""")
    if flags: poll(a, "L_op_w", f"buffer_load_ushort v8, off, s[4:7], s48 sc1",
                   "s_and_b32 s58, s56, 0xff\ns_lshr_b32 s56, s56, 8\ns_min_u32 s56, s56, s58\ns_cmp_gt_u32 s56, s49", SL2)
    a("s_mov_b32 s46, s56")
    a.label("L_op_sk")
    a(f"s_lshl_b32 s55, s54, 17\ns_lshl_b32 s49, s29, 15\ns_add_u32 s55, s55, s49\ns_add_u32 s55, s55, {hex(WS_O)}")
    a("s_cmp_lt_u32 s45, 62\ns_cselect_b32 s57, 0, 100000\ns_cbranch_scc1 L_op_ld")
    a.label("L_op_sp")
    a("""s_mov_b64 exec, 0xff
    buffer_load_dword v8, v10, s[4:7], s55 offen sc1
    s_waitcnt vmcnt(0)
    v_cmp_eq_u32 vcc, -1, v8
    s_cbranch_vccz L_op_ld
    s_sub_u32 s57, s57, 1
    s_cbranch_scc0 L_op_sp
    s_mov_b32 s57, 0""")
    a.label("L_op_ld")
    a("s_mov_b64 exec, s[52:53]\ns_mov_b32 s48, s55\nv_mov_b32 v11, 0")
    for i in range(32):
        if i % 4 == 0 and i: a("s_add_u32 s48, s48, 4096")
        a(f"buffer_load_dwordx4 {vr(128+i*4,4)}, v4, s[4:7], s48 offen offset:{(i%4)*1024} sc1")
    for ks in range(32):
        a(f"s_waitcnt vmcnt({31-ks})")
        for t in range(2):
            d = vr(16+t*4, 4)
            a(f"v_mfma_f32_16x16x32_bf16 {d}, {ar((ks*2+t)*4,4)}, {vr(128+ks*4,4)}, {'0' if ks == 0 else d}")
            a(f"v_max3_u32 v11, v11, v{128+ks*4+2*t}, v{129+ks*4+2*t}")
    a("v_cmp_eq_u32 vcc, -1, v11\ns_cbranch_vccz L_op_go\ns_sub_u32 s57, s57, 1\ns_cbranch_scc0 L_op_sp")
    a.label("L_op_go")
    a("""v_add_u32 v7, s51, v4
    v_add_u32 v9, s50, v7
    s_xor_b32 s51, s51, 0x2000
    s_nop 5
    ds_write_b128 v9, v[16:19]
    ds_write_b128 v9, v[20:23] offset:1024
    s_waitcnt lgkmcnt(0)
    s_barrier
    s_cmp_lg_u32 s29, 0
    s_cbranch_scc1 L_op_next""")
    for w in range(1, 4):
        for t in range(2): a(f"ds_read_b128 {vr(16+w*8+t*4,4)}, v7 offset:{w*2048+t*1024}")
    a("s_waitcnt lgkmcnt(0)")
    for w in range(1, 4):
        for i in range(8): a(f"v_add_f32 v{16+i}, v{16+i}, v{16+w*8+i}")
    for i in range(4): a(f"v_cvt_pk_bf16_f32 v{48+i}, v{16+i}, v{20+i}")
    a("s_lshl_b32 s48, s54, 15\nbuffer_store_dwordx4 v[48:51], v5, s[16:19], s48 offen")
    a.label("L_op_next")
    a("s_mov_b32 s58, s46\ns_mov_b32 s46, s47\ns_mov_b32 s47, s58\ns_mov_b64 exec, -1\ns_add_u32 s44, s44, 8\ns_cmp_lt_u32 s44, 128\ns_cbranch_scc1 L_op_loop\ns_waitcnt vmcnt(0)\ns_endpgm")
```

```python
from common import *
L_KX, L_MEM, L_Q, L_W = 0, 16384, 24576, 32768
L_O = L_Q + 3072
QSTR, KOFF, QX4 = 576, 256, 4128
LDS_CHAIN = 163840
SPIN = 20000
import os, re
PB1, PB2, PB3, PB4, PS, PW = eval(os.environ.get('PB', '(4, 35, 47, 0, (1,2,3,3,4,7,8), 41)'))
PV1, PD1, PD4, PV2, PD2, PD3 = eval(os.environ.get('PRM', '(0, 72, 0, 2, 2, 2)'))
LW = int(os.environ.get('LW', 0))
CYC = int(os.environ.get('CYC', 0))
CH = eval(os.environ.get('CH', '(4, 10)'))
CEXP = 0.08838834764831845 * 1.4426950408889634
import struct
def f32(x): return hex(struct.unpack("<I", struct.pack("<f", x))[0])

def roles(a, nchain_label, exit_label):
    a(f"""s_cmp_ge_u32 s2, 256
    s_cbranch_scc1 {exit_label}""")
    srd(a, 4, "ws"); srd(a, 8, "dbg")
    a("""s_getreg_b32 s31, hwreg(HW_REG_XCC_ID)
    s_and_b32 s31, s31, 7
    v_readfirstlane_b32 s29, v0
    s_lshr_b32 s29, s29, 6
    s_waitcnt lgkmcnt(0)
    s_cmp_lg_u32 s29, 0
    s_cbranch_scc1 L_role_wait
    s_mov_b64 exec, 1
    s_mov_b32 s32, 0
    v_mov_b32 v3, 0""")
    a.label("L_role_try")
    a("""s_add_u32 s33, s31, s32
    s_and_b32 s33, s33, 7
    s_lshl_b32 s34, s33, 2
    v_mov_b32 v1, 1
    buffer_atomic_add v1, off, s[8:11], s34 sc0
    s_waitcnt vmcnt(0)
    v_readfirstlane_b32 s35, v1
    s_cmp_lt_u32 s35, 32
    s_cbranch_scc1 L_role_got
    s_add_u32 s32, s32, 1
    s_cmp_lt_u32 s32, 8
    s_cbranch_scc1 L_role_try
    s_mov_b32 s33, 8
    s_mov_b32 s35, 0""")
    a.label("L_role_got")
    a("""s_lshl_b32 s33, s33, 5
    s_add_u32 s33, s33, s35
    s_lshl_b32 s32, s32, 16
    s_or_b32 s33, s33, s32
    v_mov_b32 v1, s33
    ds_write_b32 v3, v1
    s_mov_b64 exec, -1
    s_waitcnt lgkmcnt(0)""")
    a.label("L_role_wait")
    a(f"""s_barrier
    v_mov_b32 v3, 0
    ds_read_b32 v1, v3
    s_waitcnt lgkmcnt(0)
    v_readfirstlane_b32 s30, v1
    s_barrier
    s_lshr_b32 s36, s30, 16
    s_and_b32 s30, s30, 0xffff
    s_cmp_ge_u32 s30, 256
    s_cbranch_scc1 {exit_label}
    s_cmp_ge_u32 s30, 32
    s_cbranch_scc1 {nchain_label}""")

A0, AQ, AK, AV, KXR, QF, VX, SX = 0, 32, 40, 48, 56, 88, 104, 112
IDX, L16, WOB, QKW, QKR, INS, OX, MST = 120, 121, 122, 123, 124, 125, 126, 127
INL = 25
SEQ = [(m, sg, t) for m in (0, 1, 2) for sg in (0, 1) for t in (0, 1)] + [(m, sg, t) for m in (0, 1, 2) for sg in range(2, 8) for t in (0, 1)]
RING = {0: (8, None), 1: (16, None), 2: (QF, None), 3: (QF+8, None), 16: (QF, 8), 18: (QF+8, 10), 20: (SX, 12), 24: (QF, 16), 26: (QF+8, 18),
        28: (SX, 20), 32: (QF, 24), 34: (QF+8, 26), 36: (SX, 28)}
WRING = {0: (8, 40), 1: (KXR+8, 50), 2: (KXR+24, 52)}
LOC = {}; STG = {}
_l = 0; _r = 0
for i, k in list(enumerate(SEQ)) + [(100+op, (3, op >> 1, op & 1)) for op in range(16)]:
    rg = RING.get(i) if i < 100 else WRING.get(i - 100)
    if rg: LOC[k] = ('l', _l); STG[k] = rg; _l += 1
    else: LOC[k] = ('a', _r*8) if _r < 32 else ('v', 128 + (_r-32)*8); _r += 1
assert _l == 16 and _r == 48
def wreg(k):
    c, r = LOC[k]
    return vr(STG[k][0], 8) if c == 'l' else vr(r, 8, c)
def wrd(k): return [f"ds_read_b128 {vr(STG[k][0]+4*i,4)}, v{WOB} offset:{LOC[k][1]*2048+i*1024}" for i in (0, 1)]

def dma():
    o = [f"buffer_load_dwordx4 v{L16}, s[4:7], s{65+(i>>1)} offen offset:{i*1024} sc1 lds" for i in range(4)]
    return o + [f"s_add_u32 s{sg}, s{sg}, {32*8192}" for sg in (65, 66)]

def TSR(i): return 80+2*i if i < 7 else 16
class Em:
    def __init__(s, a): s.a = a; s.pend = []
    def need(s, lns):
        k = None
        for ln in lns:
            if ln.endswith(":"): continue
            c = classify(ln); use = c["r"] | c["w"]
            for i, w in enumerate(s.pend):
                if w & use: k = min(k, len(s.pend)-1-i) if k is not None else len(s.pend)-1-i
        if k is not None: s.raw(f"s_waitcnt lgkmcnt({min(k, 15)})")
    def raw(s, ln):
        s.a(ln)
        m = re.search(r"lgkmcnt\((\d+)\)", ln)
        if m: n = int(m.group(1)); s.pend = s.pend[len(s.pend)-n:] if n else []
        if ln.startswith("ds_"): s.pend.append(classify(ln)["w"])
    def __call__(s, txt):
        for ln in txt.split("\n"):
            ln = ln.strip()
            if ln: s.need([ln]); s.raw(ln)
    def gaps(s, main, X, V, T={}):
        for i, m in enumerate(main):
            s(m)
            for x in X.get(i, []): s(x)
            s.need(V.get(i, []) + main[i+1:i+2])
            for x in V.get(i, []): s(x)
            if i in T: T[i]()

def chain(a, ts=False, merged=False, nsteps=64):
    a("s_mov_b32 s28, s30")
    if ts and 'rt' in ts: a("s_memrealtime s[80:81]")
    srd(a, 12, "Wq"); srd(a, 16, "Wk"); srd(a, 20, "Wv"); srd(a, 24, "Wo"); srd(a, 40, "mem0")
    a(f"""v_and_b32 v1, 63, v0
    v_lshlrev_b32 v{L16}, 4, v1
    v_and_b32 v2, 15, v1
    v_lshrrev_b32 v3, 4, v1
    s_lshl_b32 s37, s29, 15
    s_add_u32 s37, s37, {L_W}
    v_add_u32 v{WOB}, s37, v{L16}
    v_mov_b32 v4, 0x4444
    v_mov_b32 v5, 0xeeee
    v_and_b32 v6, 2, v2
    v_cmp_eq_u32 vcc, 0, v6
    s_nop 1
    v_cndmask_b32 v{IDX}, v5, v4, vcc""")
    a(f"""v_and_b32 v4, 1, v3
    v_mul_u32_u24 v4, {2*QSTR}, v4
    v_lshl_add_u32 v4, v2, 2, v4
    v_lshrrev_b32 v5, 1, v3
    v_mul_u32_u24 v5, {QX4}, v5
    v_xor_b32 v4, v4, v5
    s_lshl_b32 s37, s29, 6
    s_add_u32 s37, s37, {L_Q}
    v_add_u32 v{QKW}, s37, v4""")
    a(f"""v_lshrrev_b32 v4, 2, v2
    v_and_b32 v5, 1, v2
    v_lshl_add_u32 v12, v4, 1, v5
    v_and_b32 v4, 3, v12
    v_mul_u32_u24 v4, {QSTR}, v4
    v_lshl_add_u32 v4, v3, 4, v4
    v_lshrrev_b32 v5, 2, v12
    v_mul_u32_u24 v5, {QX4}, v5
    v_xor_b32 v4, v4, v5
    v_add_u32 v{QKR}, {L_Q}, v4""")
    a(f"""v_lshrrev_b32 v5, 2, v2
    v_lshl_add_u32 v4, v5, 2, v3
    v_lshlrev_b32 v4, 11, v4
    v_and_b32 v5, 3, v2
    v_lshl_add_u32 v4, v5, 4, v4
    s_lshl_b32 s37, s29, 16
    s_lshl_b32 s38, s28, 6
    s_add_u32 s37, s37, s38
    v_add_u32 v{INS}, s37, v4""")
    a(f"""v_lshl_add_u32 v4, v3, 2, v5
    v_lshlrev_b32 v4, 6, v4
    v_lshrrev_b32 v5, 2, v2
    v_lshl_add_u32 v4, v5, 4, v4
    s_lshl_b32 s37, s28, 2
    s_add_u32 s37, s37, s29
    s_lshl_b32 s38, s37, 11
    s_mov_b32 s74, s38
    v_add_u32 v{INL}, s38, v4""")
    a(f"""v_lshlrev_b32 v4, 4, v2
    v_lshl_add_u32 v4, v3, 2, v4
    s_lshl_b32 s100, s37, 6
    v_add_u32 v{MST}, s100, v4""")
    a("v_cmp_gt_u32 s[44:45], 4, v2")
    a("v_and_b32 v4, 1, v2\nv_lshrrev_b32 v5, 2, v2\nv_lshl_add_u32 v5, v4, 2, v5\nv_lshrrev_b32 v4, 1, v5")
    for i in range(4): a(f"v_cmp_eq_u32 s[{46+2*i}:{47+2*i}], {i}, v4")
    a("v_and_b32 v4, 1, v5\nv_cmp_eq_u32 s[54:55], 1, v4")
    a("v_mov_b32 v8, -1\nv_mov_b32 v9, -1\nv_mov_b32 v10, -1\nv_mov_b32 v11, -1")
    a(f"s_mov_b32 s56, {hex(WS_INBOX)}\ns_mov_b32 s57, {hex(WS_INBOX+0x40000)}\ns_waitcnt lgkmcnt(0)")
    for sl in (56, 57):
        for o in (0, 1024): a(f"buffer_store_dwordx4 v[8:11], v{INL}, s[4:7], s{sl} offen offset:{o} sc1")
    a("s_lshl_b32 s56, s28, 12\ns_lshl_b32 s57, s29, 10\ns_add_u32 s56, s56, s57")
    for b in (WS_KM, WS_VM):
        for sg in (61, 62, 63): a(f"s_add_u32 s57, s56, {hex(b + sg*32*4096)}\nbuffer_store_dwordx4 v[8:11], v{L16}, s[4:7], s57 offen sc1")
    a("s_mov_b64 exec, s[44:45]")
    for sl in range(4):
        a(f"s_mov_b32 s58, {hex(WS_MEMF + sl*8192)}\nbuffer_store_dword v8, v{MST}, s[4:7], s58 offen sc1")
    a(f"s_mov_b64 exec, 1\nv_mov_b32 v9, 0\ns_lshl_b32 s98, s28, 7\ns_add_u32 s98, s98, {hex(WS_FL)}")
    for i in range(3): a(f"s_add_u32 s58, s98, {i*0x1000}\nbuffer_store_dword v9, off, s[4:7], s58 sc1")
    a("s_add_u32 s95, s98, 0x1000\ns_mov_b64 exec, -1\ns_nop 1")
    a("""s_lshl_b32 s38, s29, 2
    v_xor_b32 v6, s38, v2
    v_lshlrev_b32 v6, 4, v6
    v_lshl_add_u32 v6, v3, 13, v6
    s_and_b32 s37, s29, 1
    s_lshr_b32 s38, s29, 1
    s_lshl2_add_u32 s59, s38, s37
    s_lshl_b32 s37, s59, 15
    s_lshl_b32 s38, s28, 8
    s_add_u32 s37, s37, s38
    v_add_u32 v6, s37, v6
    s_lshl_b32 s59, s59, 10
    v_lshlrev_b32 v7, 12, v3
    v_lshl_add_u32 v7, v2, 3, v7
    s_lshl_b32 s37, s28, 17
    s_lshl_b32 s38, s29, 8
    s_add_u32 s37, s37, s38
    v_add_u32 v7, s37, v7
    v_lshrrev_b32 v4, 1, v3
    v_and_b32 v5, 1, v3
    v_lshl_add_u32 v4, v4, 2, v5
    v_lshlrev_b32 v4, 10, v4
    v_xor_b32 v5, s29, v3
    v_lshl_add_u32 v4, v5, 6, v4
    v_lshl_add_u32 v4, v2, 2, v4
    s_lshl_b32 s37, s29, 13
    v_add_u32 v8, s37, v4
    v_xor_b32 v9, 0x2000, v8
    v_xor_b32 v10, 0x4000, v8
    v_xor_b32 v11, 0x6000, v8
    s_mov_b32 s60, 0x05040100
    s_mov_b32 s61, 0x07060302""")
    e = Em(a); vq = []
    def vwait(tag): a(f"s_waitcnt vmcnt({len(vq) - 1 - max(i for i, x in enumerate(vq) if x == tag)})")
    groups = [(m, c, hb) for m in range(3) for c in range(2) for hb in range(2)]
    park = dict(zip([k for k in SEQ if LOC[k][0] == 'l'], [LOC[k][1] for k in LOC if k[0] == 3 and LOC[k][0] == 'v']))
    assert len(park) == 13
    def gissue(gi):
        m, c, hb = groups[gi]
        for j in range(4):
            for q in range(2):
                a(f"s_add_u32 m0, s59, {(gi % 5)*32768 + j*8192 + q*2048}\ns_mov_b32 s63, {((2*j+c)*64 + hb*32 + q*8)*8192}")
                a(f"buffer_load_dwordx4 v6, s[{12+4*m}:{15+4*m}], s63 offen lds"); vq.append(("g", gi))
    def gread(gi, j):
        st = 96 + (j % 3)*8; o = (gi % 5 & 1)*128
        for r in range(4):
            row = 8*(r & 1) + 2*(r >> 1) + o
            e(f"ds_read2st64_b32 {vr(st+2*r,2)}, v{8+j} offset0:{row} offset1:{row+1}")
    def gcons(gi, j):
        m, c, hb = groups[gi]; st = 96 + (j % 3)*8
        for t in range(2):
            k = (m, 2*j+c, t); kd, rr = LOC[k]
            if kd == 'l': kd, rr = 'v', park[k]
            for r in range(4): e(f"v_perm_b32 v{rr+4*hb+r if kd == 'v' else 12+r}, v{st+2*r+1}, v{st+2*r}, s{60+t}")
            if kd == 'a':
                for r in range(4): e(f"v_accvgpr_write_b32 a{rr+4*hb+r}, v{12+r}")
    NS = 5
    def issue(bi):
        base = 16 + (bi % NS) * 16
        a(f"s_xor_b32 s62, s29, {bi >> 1}\ns_lshl_b32 s62, s62, 15")
        for x in range(8):
            a(f"s_add_u32 s63, s62, {(16*(x >> 2) + (x & 3))*1024 + (bi & 1)*128}")
            a(f"buffer_load_dwordx2 {vr(base+2*x,2)}, v7, s[24:27], s63 offen"); vq.append(("w", bi))
    def consume(bi):
        base = 16 + (bi % NS) * 16
        for t in range(2):
            kd, rr = LOC[(3, bi, t)]
            for rho in range(8):
                sr_ = base + (rho >> 1)*4 + (rho & 1)
                e(f"v_perm_b32 v{rr+rho if kd == 'v' else 96+t*8+rho}, v{sr_+2}, v{sr_}, s{60+t}")
            if kd == 'l':
                for i in range(2): e(f"ds_write_b128 v{WOB}, {vr(96+t*8+4*i,4)} offset:{rr*2048 + i*1024}")
                e("s_waitcnt lgkmcnt(0)")
    a("v_mov_b32 v5, v12")
    for gi in range(5): gissue(gi)
    a('s_waitcnt vmcnt(40)\ns_barrier')
    a("""s_cmp_lg_u32 s29, 0
    s_cbranch_scc1 L_ch_noinc
    s_cmp_lg_u32 s36, 0
    s_cselect_b32 s58, 0x10001, 1
    s_mov_b64 exec, 1
    v_mov_b32 v13, s58
    buffer_atomic_add v13, off, s[8:11], 0 offset:32
    s_mov_b64 exec, -1""")
    a.label("L_ch_noinc")
    vq.insert(0, 0)
    for gi in range(12):
        vwait(("g", gi)); a("s_barrier")
        if 1 <= gi and gi + 4 < 12: gissue(gi + 4)
        if gi >= 7: issue(gi - 7)
        d = ((gi % 5) >> 1) - (((gi-1) % 5) >> 1) if gi else 0
        if d:
            for j in range(4): a(f"v_add_u32 v{8+j}, {hex((d*65536) & 0xffffffff)}, v{8+j}")
        gread(gi, 0); gread(gi, 1)
        for j in range(4):
            if j + 2 < 4: gread(gi, j + 2)
            gcons(gi, j)
    a("s_barrier\nv_mov_b32 v12, v5")
    for k, rr in park.items():
        for i in range(2): a(f"ds_write_b128 v{WOB}, {vr(rr+4*i,4)} offset:{LOC[k][1]*2048 + i*1024}")
    a("s_waitcnt lgkmcnt(0)")
    for bi in range(8):
        vwait(("w", bi)); consume(bi)
        if bi + NS < 8: issue(bi + NS)
    if ts and 'rt' in ts: a("s_memrealtime s[82:83]")
    a(f"""s_lshl_b32 s37, s28, 13
    s_lshl_b32 s38, s29, 11
    s_add_u32 s37, s37, s38
    s_add_u32 s65, s37, {hex(WS_KX)}
    s_add_u32 s66, s37, {hex(WS_VX-2048)}
    s_lshr_b32 s37, s37, 1
    s_add_u32 s67, s37, {hex(WS_KM)}
    s_add_u32 s68, s37, {hex(WS_VM)}
    s_lshl_b32 s73, s38, 1
    s_mov_b32 m0, s73
    s_mov_b32 s64, 0
    s_mov_b32 s72, {hex(WS_INBOX)}""")
    if merged: merged["wait_proj"](a, 1)
    a(f"s_sub_u32 s67, s67, {32*4096}\ns_sub_u32 s68, s68, {32*4096}")
    for x in dma(): a(x)
    a("""v_lshlrev_b32 v4, 10, v12
    v_lshl_add_u32 v4, v3, 5, v4
    v_and_b32 v5, 2, v2
    v_cmp_ne_u32 s[12:13], 0, v5
    v_lshl_add_u32 v4, v5, 3, v4
    s_lshl_b32 s37, s29, 8
    buffer_load_dwordx4 v[8:11], v4, s[40:43], s37 offen
    buffer_load_dwordx4 v[12:15], v4, s[40:43], s37 offen offset:128""")
    for i in range(2):
        a(f"s_add_u32 s37, s74, {hex(WS_INBOX + i*0x40000)}")
        for o in (0, 1024): a(f"buffer_load_dwordx4 v[16:19], v{L16}, s[4:7], s37 offen offset:{o}")
    a("s_lshl_b32 s38, s29, 11")
    for i in range(4):
        a(f"s_add_u32 s37, s38, {hex(WS_MEMF + i*8192)}")
        for o in (0, 1024): a(f"buffer_load_dwordx4 v[16:19], v{L16}, s[4:7], s37 offen offset:{o}")
    a(f"s_mov_b32 s75, {SPIN*10}")
    a.label("L_ch_rdy")
    a("""buffer_load_dword v16, off, s[8:11], 0 offset:32 sc1
    s_waitcnt vmcnt(0)
    v_readfirstlane_b32 s37, v16
    s_and_b32 s38, s37, 0xffff
    s_sub_u32 s75, s75, 1
    s_cselect_b32 s38, 32, s38
    s_cmp_lt_u32 s38, 32
    s_cbranch_scc1 L_ch_rdy
    s_barrier""")
    if ts and 'rt' in ts or not merged: a("s_memrealtime s[84:85]")
    if CYC: a("s_memtime s[84:85]")
    for i in range(8): a(f"v_mov_b32 v{i}, v{8+i}")
    a(f"s_lshl_b32 s76, s29, 11\ns_add_u32 s77, s76, {L_MEM}\ns_mov_b32 s78, {f32(CEXP)}\ns_lshl_b32 s79, s29, 6")
    a(f"s_lshr_b32 s38, s29, 1\ns_lshl_b32 s38, s38, 7\ns_and_b32 s94, s29, 1\ns_add_u32 s38, s38, s94\ns_lshl_b32 s38, s38, 5\ns_add_u32 s38, s38, {L_O}\ns_mov_b32 s94, 100000\nv_and_b32 v{OX}, 0x3df, v{L16}\nv_add_u32 v{OX}, s38, v{OX}\ns_not_b64 s[14:15], s[12:13]\ns_mov_b32 s101, 0\ns_mov_b32 s39, 0")
    a("s_lshr_b32 s37, s37, 16\ns_cmp_lg_u32 s37, 0\ns_cbranch_scc1 L_slow_entry")
    loop(a, "f", "", ts, merged, nsteps)
    a.label("L_slow_entry")
    loop(a, "s", " sc1", False, merged, nsteps)


def loop(a, tag, sc, ts, merged, nsteps):
    def T(i):
        if ts and i in ts: a(f"s_memtime s[{TSR(i)}:{TSR(i)+1}]" if 'w' not in ts else f"s_memrealtime s[{TSR(i)}:{TSR(i)+1}]")
        if ts and i == 7 and 'rt' in ts: a("s_memrealtime s[92:93]")
    e = Em(a)
    MB = 28
    def kmrd(): return [f"v_add_u32 v24, s79, v{QKR}", f"ds_read_b128 {vr(SX,4)}, v24 offset:{KOFF}"]
    def preA():
        o = [f"v_add_u32 v{MB}, s77, v{L16}", f"v_add_u32 v26, s73, v{L16}"] + kmrd()
        o += [f"ds_read_b128 {vr(KXR+4*i,4)}, v{L16} offset:{(i>>1)*4096+(i&1)*1024}" for i in range(8)]
        o += [f"ds_read_b128 {vr(VX+4*t,4)}, v26 offset:{2048+t*1024}" for t in range(2)]
        for g in range(4): o += wrd(SEQ[g])
        for i in range(4): o.append(f"v_mov_b32 v{SX+4+i}, v{AV+i}")
        for i in range(8): o.append(f"v_mov_b32 v{AV+i}, 0")
        for j in (1, 2, 3): o.append(f"v_xor_b32 v{MB+j}, {j*2048}, v{MB}")
        return o + ["v_mov_b32 v27, s101", "s_waitcnt lgkmcnt(0)", "s_barrier"]
    def preB(chk=True): return [f"v_mov_b32 v{AK+4+i}, -1" for i in range(4)] + [f"ds_write_b128 v{OX}, {vr(AK+4,4)}"] + [f"v_mov_b32 v{AQ+i}, 0" for i in range(16)] + (merged["wait_proj_loop"](tag) if merged and chk else [])
    def add(d, g, l): d.setdefault(g, []).extend(l)
    for x in preA() + preB(False): a(x)
    a(f"s_mov_b64 s[56:57], 0\ns_branch L{tag}_ent")
    dw = f"L{tag}_ent:\nds_write_b128 v{MB}, v[0:3]\nds_write_b128 v{MB}, v[4:7] offset:1024\n"
    c1 = "v_cmp_eq_u32 s[58:59], -1, v0\nv_cmp_eq_u32 s[62:63], -1, v4\n"; c2 = c1.replace("v0", "v24").replace("v4\n", "v26\n")
    mx = "v_max3_u32 v24, v0, v1, v2\nv_max3_u32 v26, v4, v5, v6\nv_max_u32 v24, v24, v3\nv_max_u32 v26, v26, v7\n"
    P2V = int(os.environ.get('P2V', 0))
    P2C = [c1 + f"L{tag}_ent:", c1 + dw, mx + dw + c2, mx + c2 + dw, "v_max_u32 v24, v0, v3\nv_max_u32 v26, v4, v7\n" + c2 + dw][P2V]
    AL = int(os.environ.get('AL', 8))
    if AL >= 0:
        a(".p2align 6")
        for i in range(AL): a("s_nop 0")
    a.label(f"L{tag}_p2")
    a(f"""s_mov_b64 exec, s[58:59]
    buffer_load_dwordx4 v[0:3], v{L16}, s[4:7], s69 offen sc1
    s_mov_b64 exec, s[62:63]
    buffer_load_dwordx4 v[4:7], v{L16}, s[4:7], s69 offen offset:1024 sc1
    s_mov_b64 exec, -1
    s_sub_u32 s75, s75, 1
    s_cselect_b64 s[56:57], 0, -1
    s_waitcnt vmcnt({PV2})
    {P2C}
    s_or_b64 vcc, s[58:59], s[62:63]
    s_and_b64 vcc, vcc, s[56:57]
    s_cbranch_vccnz L{tag}_p2""")
    a.label(f"L{tag}_body")
    T(0)
    def sm(k):
        mat, sg, t = k; acc = (AQ, AK, AV)[mat] + 4*t
        return f"v_smfmac_f32_16x16x64_bf16 {vr(acc,4)}, {vr(A0+4*sg,4)}, {wreg(k)}, v{IDX}"
    def mf(d, x, y, c): return f"v_mfma_f32_16x16x32_bf16 {vr(d,4)}, {vr(x,4)}, {vr(y,4)}, {c}"
    def mf16(d, x, y, c): return f"v_mfma_f32_16x16x16_bf16 {vr(d,4)}, {vr(x,2)}, {vr(y,2)}, {c}"
    KF = [KXR, KXR+4, KXR+16, KXR+20]
    SM, HALF, MX, T1, ONE, LA, OA, PK = AK, AK+4, AK+6, AK+7, 16, 20, 24, AK
    DD = [0, 4, AQ, AQ+4]
    main = [sm(k) for k in SEQ[:42]]
    main += [mf(SX+4*Tt, KXR+16*Tt+4*ks, QF+4*ks, "0" if ks == 0 else vr(SX+4*Tt, 4)) for ks in range(4) for Tt in (0, 1)]
    main += [sm(k) for k in SEQ[42:]]
    main += [mf(SM, KF[ks], QF+4*ks, "0" if ks == 0 else vr(SM, 4)) for ks in range(4)]
    rdA = [f"ds_read_b128 {vr(A0+4*sg,4)}, v{MB+(sg>>1)} offset:{(sg&1)*1024}" for sg in range(2, 8)]
    dm = dma()
    X = {} if P2V else {0: dw.split('\n')[1:3]}
    V = {}
    add(X, PB1, ["s_waitcnt lgkmcnt(0)", "s_barrier"] + rdA[:2]); add(X, PB1+1, rdA[2:4]); add(X, PB1+2, rdA[4:6])
    vm = dm[:4] + (merged["flagld"] if merged else []) + [f"buffer_store_dwordx4 {vr(SX+4*i,4)}, v{L16}, s[4:7], s{67+i} offen sc1" for i in (0, 1)]
    for g, x in zip(PS, vm): X[g] = [x] + X.get(g, []) if g == PB1 else X.get(g, []) + [x]
    add(X, 22, dm[4:]); add(X, 30, [f"s_add_u32 s67, s67, {32*4096}", f"s_add_u32 s68, s68, {32*4096}"])
    add(X, PW, [f"s_waitcnt vmcnt({8 if merged else 6})"])
    if merged: add(X, PB1+1, merged["flag"](tag)); assert PS[4] <= PB1
    for k, (r, g) in STG.items():
        if g is not None: add(X, g, wrd(k)[:1]); add(X, g+1, wrd(k)[1:])
    for i in range(8): add(V, (list(range(PW, 25)) + [47, 48, 49, 45, 47, 48, 49, 45])[i], [f"v_mov_b32 v{i}, 0"])
    def hsum(acc): return [f"v_add_f32 v{acc+i}, v{acc+i}, v{acc+i+2}" for i in (0, 1, 4, 5)] + [f"v_cvt_pk_bf16_f32 v{acc+i}, v{acc+i}, v{acc+4+i}" for i in (0, 1)]
    def hwr(acc, off): return [f"ds_write2_b32 v{QKW}, v{acc}, v{acc+1} offset0:{off//4} offset1:{(off+QSTR)//4}"]
    for i, x in enumerate(hsum(AQ)): add(V, 25+i, [x])
    add(X, 31, hwr(AQ, 0))
    rq = [f"ds_read_b128 {vr(QF+4*ks,4)}, v{QKR} offset:{ks*64}" for ks in range(4)]
    add(X, PB2, ["s_waitcnt lgkmcnt(0)", "s_barrier"] + rq[:2]); add(X, PB2+1, rq[2:])
    for i in range(8): add(V, (31, 32, 33, 34, 35, 43, 43, 46)[i], [f"v_mov_b32 v{AQ+7-i}, 0"])
    for i, x in enumerate(hsum(AK)): add(V, 36+i, [x])
    add(X, 42, hwr(AK, KOFF))
    rk = [f"ds_read_b128 {vr(KF[ks],4)}, v{T1} offset:{KOFF+ks*64}" for ks in range(4)]
    add(X, PB3, ["s_waitcnt lgkmcnt(0)", "s_barrier"] + rk[:2]); add(X, PB3+1, rk[2:])
    add(V, 42, [f"v_xor_b32 v{T1}, {QX4}, v{QKR}", f"v_cndmask_b32 v{T1}, v{QKR}, v{T1}, s[12:13]"])
    for i in range(4): add(V, (44, 44, 46, 50)[i], [f"v_mov_b32 v{ONE+i}, 0x3f803f80"])
    for i in range(4): add(V, 51+i, [f"v_cndmask_b32 v{SX+i}, v{SX+i}, v{SX+4+i}, s[12:13]"])
    cv = [f"v_cvt_pk_bf16_f32 v{AV+i}, v{AV+2*i}, v{AV+2*i+1}" for i in range(4)]
    add(V, 55, [f"v_max3_f32 v{MX}, v{SX}, v{SX+1}, v{SX+2}"]); add(V, 56, [f"v_max_f32 v{MX}, v{MX}, v{SX+3}", cv[0]])
    add(V, 57, [f"v_max_f32_dpp v{MX}, v{MX}, v{MX} quad_perm:[2,3,0,1] row_mask:0xf bank_mask:0xf", f"v_max_f32_dpp v{T1}, v{MX}, v{MX} quad_perm:[2,3,0,1] row_mask:0xf bank_mask:0xf"][::-1])
    add(V, 58, [cv[1], f"v_permlane32_swap_b32 v{MX}, v{T1}"])
    add(V, 59, cv[2:] + [f"v_max_f32 v{MX}, v{MX}, v{T1}"] + [f"v_mov_b32 v{HALF+i}, 0x3f003f00" for i in (0, 1)] + [f"s_cmp_eq_u32 s64, {nsteps-1}", f"s_cbranch_scc1 L{tag}_end", "s_nop 0"])
    e.gaps(main, X, V, {23: lambda: T(1), 35: lambda: T(2), 49: lambda: T(3)})
    PM = SM + 2
    fm = lambda r: f"v_fma_f32 v{r}, v{r}, s78, -v{T1}"
    ex = lambda r: f"v_exp_f32 v{r}, v{r}"
    dp = lambda d, s, q: f"v_mov_b32_dpp v{d}, v{s} quad_perm:[{q},{q+1},{q},{q+1}] row_mask:0xf bank_mask:0xf"
    e(f"""v_max3_f32 v{MX}, v{MX}, v{SM}, v{SM+1}
    v_max3_f32 v{T1}, v{MX}, v{SM+2}, v{SM+3}
    v_max3_f32 v{MX}, v{MX}, v{SM+2}, v{SM+3}
    s_nop 1
    v_permlane16_swap_b32 v{MX}, v{T1}
    v_max_f32 v{MX}, v{MX}, v{T1}
    v_mul_f32 v{T1}, s78, v{MX}""")
    for x in [fm(SM), fm(SM+1), ex(SM), ex(SM+1), fm(SX), fm(SX+1), f"v_cvt_pk_bf16_f32 v{PM}, v{SM}, v{SM+1}", f"v_cvt_pk_bf16_f32 v{PM+1}, v{SM}, v{SM+1}",
              fm(SX+2), fm(SX+3), mf16(LA, HALF, PM, "0"), ex(SX), mf16(OA, AV, PM, "0"), ex(SX+1), mf16(OA+4, AV+2, PM, "0"), ex(SX+2), ex(SX+3),
              f"v_cvt_pk_bf16_f32 v{SX+4}, v{SX}, v{SX+1}", f"v_cvt_pk_bf16_f32 v{SX+5}, v{SX+2}, v{SX+3}", "s_nop 0",
              dp(SX, SX+4, 0), dp(SX+2, SX+4, 2), dp(SX+1, SX+5, 0), dp(SX+3, SX+5, 2), "s_nop 1"]: e(x)
    T(4)
    XO = QF + 12
    e(mf(LA, ONE, SX, vr(LA, 4))); e(f"v_xor_b32 v{XO+1}, 32, v{OX}\nv_xor_b32 v{XO+2}, 4096, v{OX}")
    e(mf(OA, VX, SX, vr(OA, 4))); e(f"v_xor_b32 v{XO+3}, 4128, v{OX}"); e(mf(OA+4, VX+4, SX, vr(OA+4, 4)))
    e(f"v_rcp_f32 v{LA}, v{LA}\ns_nop 2")
    for i in range(8): e(f"v_mul_f32 v{OA+i}, v{OA+i}, v{LA}")
    for i in range(4): e(f"v_cvt_pk_bf16_f32 v{OA+i}, v{OA+i}, v{OA+4+i}")
    e(f"s_mov_b64 exec, s[14:15]\nds_write_b128 v{OX}, {vr(OA,4)}\ns_mov_b64 exec, -1")
    e(f"s_waitcnt {'' if LW else f'vmcnt({3 if merged else 2}) '}lgkmcnt(1)\ns_barrier\nL{tag}_wo:")
    T(5)
    OF = [OA, QF, QF+4, QF+8]
    order = [0, 1, 2, 3, 4, 5, 8, 9, 12, 13, 6, 7, 10, 14, 11, 15]
    main = [f"v_smfmac_f32_16x16x64_bf16 {vr(DD[op&3],4)}, {vr(OF[op>>2],4)}, {wreg((3, op>>1, op&1))}, v{IDX}" for op in order]
    X = {PB4: [f"ds_read_b128 {vr(OF[j],4)}, v{XO+j}" for j in (1, 2, 3)],
         13: ["s_add_u32 s37, s72, 0x8000", f"s_cbranch_vccnz L{tag}_redo", f"L{tag}_cont:"], 14: [f"buffer_store_dwordx4 {vr(PK,4)}, v{INS}, s[4:7], s72 offen{sc}"]}
    def pk(u, dst): return [f"v_cvt_pk_bf16_f32 v{dst+2*aa+i}, v{DD[2*u+aa]+2*i}, v{DD[2*u+aa]+2*i+1}" for aa in (0, 1) for i in (0, 1)]
    tagop = lambda r: f"v_and_or_b32 v{r}, v{r}, -2, s39"
    p0 = pk(0, PK); p1 = pk(1, PK+4)
    V = {10: p0[:1], 11: [tagop(PK), p0[1]], 12: p0[2:3], 13: p0[3:], 15: [p1[0], tagop(PK+4), p1[1], "s_nop 2", p1[2], p1[3]]}
    il = [f"v_and_b32 v17, 0x330, v{L16}", f"v_and_b32 v18, 0x30, v{L16}", "v_lshl_add_u32 v17, v18, 1, v17", "v_add_u32 v17, v18, v17", f"v_bfe_u32 v18, v{L16}, 6, 2",
          f"v_lshl_add_u32 v{INL}, v18, 4, v17"]
    ck = [f"v_max3_u32 v17, v{QF}, v{QF+1}, v{QF+2}"] + [f"v_max3_u32 v17, v17, v{QF+3+2*i}, v{QF+4+2*i}" for i in range(4)] + [f"v_max_u32 v17, v17, v{QF+11}", "v_cmp_eq_u32 vcc, -1, v17"]
    for i, x in enumerate(ck): V.setdefault((4, 6, 7, 8, 9, 9, 10)[i], []).append(x)
    X[12] = ["s_add_u32 s58, s72, s74", f"s_mov_b32 s75, {SPIN}"]
    if merged and not LW: V[5] = [f"v_readfirstlane_b32 s56, v{MST}"]
    e.gaps(main, X, V)
    a(f"buffer_store_dwordx4 {vr(PK+4,4)}, v{INS}, s[4:7], s37 offen{sc}")
    T(6)
    D0, D1, t0, t1, t2, t3 = AK, AK+4, AQ, AQ+1, AQ+2, AQ+3
    pr = ["s_mov_b64 s[60:61], -1", "s_mov_b64 s[62:63], -1", "v_mov_b32 v4, 0x3f80", "v_mov_b32 v5, 0x3f800000", "v_cndmask_b32 v4, v4, v5, s[54:55]"]
    pr += [f"v_cndmask_b32 v{i}, 0, v4, s[{46+2*i}:{47+2*i}]" for i in range(4)]
    if LW: pr += [f"s_waitcnt vmcnt({5 if merged else 4})", "s_barrier"] + ([f"v_readfirstlane_b32 s56, v{MST}"] if merged else [])
    pr += f"""v_mov_b32 v{t3}, -1
    v_bfe_u32 v{t0}, v{L16}, 8, 1
    v_and_b32 v{MST}, 0x20, v{L16}
    v_lshl_add_u32 v{MST}, v{t0}, 4, v{MST}
    v_bfe_u32 v{t0}, v{L16}, 4, 1
    v_lshl_add_u32 v{MST}, v{t0}, 3, v{MST}
    v_bfe_u32 v{t0}, v{L16}, 9, 1
    v_lshl_add_u32 v{MST}, v{t0}, 2, v{MST}
    s_mov_b32 s101, s64
    s_add_u32 s64, s64, 1
    s_and_b32 s37, s64, 3
    s_lshl_b32 s37, s37, 13
    s_add_u32 s70, s37, {hex(WS_MEMF)}
    s_add_u32 s69, s70, s76
    s_add_u32 s70, s70, s100
    s_xor_b32 s71, s70, 0x4000""".split("\n")
    if merged: pr += merged["upd"].split("\n")
    pa = preA(); pr = [x.strip().replace("v17", f"v{t0}").replace("v18", f"v{t1}") for x in pr]
    dsr = [x for x in pa if x.startswith("ds_")]; oth = pr + [x for x in pa[3:-2] if not x.startswith("ds_")]
    pr = pa[:3]
    while dsr or oth:
        pr += dsr[:CH[0]] + oth[:CH[1]]; dsr = dsr[CH[0]:]; oth = oth[CH[1]:]
    pr += pa[-2:]
    assert not LW
    for x in pr[:PD1]: a(x)
    a(f"""buffer_load_dwordx4 {vr(D0,4)}, v{L16}, s[4:7], s58 offen sc1
    buffer_load_dwordx4 {vr(D1,4)}, v{L16}, s[4:7], s58 offen offset:1024 sc1""")
    for x in pr[PD1:]: a(x)
    for i in range(PD4): a("s_nop 15")
    if PV1 == 4:
        a(f"buffer_load_dwordx4 {vr(D0,4)}, v{L16}, s[4:7], s58 offen sc1\nbuffer_load_dwordx4 {vr(D1,4)}, v{L16}, s[4:7], s58 offen offset:1024 sc1\ns_nop 15\ns_nop 7")
    if not PV1: a(f"s_branch L{tag}_p1w")
    a.label(f"L{tag}_p1")
    a(f"""s_mov_b64 exec, s[60:61]
    buffer_load_dwordx4 {vr(D0,4)}, v{L16}, s[4:7], s58 offen sc1
    s_mov_b64 exec, s[62:63]
    buffer_load_dwordx4 {vr(D1,4)}, v{L16}, s[4:7], s58 offen offset:1024 sc1
    s_mov_b64 exec, -1
    L{tag}_p1w:
    s_sub_u32 s75, s75, 1
    s_cselect_b64 s[56:57], 0, -1
    s_waitcnt vmcnt({PV1})
    v_and_b32 v{t0}, 1, v{D0}
    v_and_b32 v{t1}, 1, v{D1}
    v_mfma_f32_16x16x32_bf16 v[4:7], v[0:3], {vr(D0,4)}, 0
    v_cmp_ne_u32 s[60:61], s39, v{t0}
    v_cmp_ne_u32 s[62:63], s39, v{t1}
    v_mfma_f32_16x16x32_bf16 v[4:7], v[0:3], {vr(D1,4)}, v[4:7]
    s_or_b64 vcc, s[60:61], s[62:63]
    s_and_b64 vcc, vcc, s[56:57]
    s_cbranch_vccnz L{tag}_p1
    s_nop 4
    v_add_f32_dpp v4, v4, v4 row_ror:4 row_mask:0xf bank_mask:0xf
    v_add_f32_dpp v5, v5, v5 row_ror:4 row_mask:0xf bank_mask:0xf
    s_nop 0
    v_add_f32_dpp v4, v4, v4 row_ror:8 row_mask:0xf bank_mask:0xf
    v_add_f32_dpp v5, v5, v5 row_ror:8 row_mask:0xf bank_mask:0xf
    s_mov_b64 exec, s[44:45]
    v_cvt_pk_bf16_f32 v{t2}, v4, v5
    buffer_store_dword v{t2}, v{MST}, s[4:7], s70 offen{sc}
    buffer_store_dword v{t3}, v{MST}, s[4:7], s71 offen{sc}
    s_mov_b64 exec, -1
    s_xor_b32 s72, s72, 0x40000
    s_lshr_b32 s39, s64, 1
    s_and_b32 s39, s39, 1
    s_mov_b32 s75, {SPIN}""")
    T(7)
    if PV1: a("s_waitcnt vmcnt(2)")
    if ts:
        a("s_waitcnt lgkmcnt(0)\ns_mov_b64 exec, 1")
        for i in range(8): a(f"v_mov_b32 v{AK+i}, s{TSR(i)}")
        a(f"s_lshl_b32 s37, s28, 2\ns_add_u32 s37, s37, s29\ns_lshl_b32 s37, s37, 6\ns_add_u32 s37, s37, s64\ns_lshl_b32 s37, s37, 5\ns_add_u32 s37, s37, {hex(WS_TS)}")
        a(f"buffer_store_dwordx4 {vr(AK,4)}, off, s[4:7], s37\nbuffer_store_dwordx4 {vr(AK+4,4)}, off, s[4:7], s37 offset:16\ns_mov_b64 exec, -1\ns_nop 1")
    a("s_mov_b64 s[58:59], -1\ns_mov_b64 s[62:63], -1")
    for x in preB(): a(x)
    for i in range(PD2 - 1): a("s_nop 15")
    if PV2: a(f"""buffer_load_dwordx4 v[0:3], v{L16}, s[4:7], s69 offen sc1
    buffer_load_dwordx4 v[4:7], v{L16}, s[4:7], s69 offen offset:1024 sc1""")
    for i in range(PD3): a("s_nop 15")
    if PV2 == 4:
        a(f"buffer_load_dwordx4 v[0:3], v{L16}, s[4:7], s69 offen sc1\nbuffer_load_dwordx4 v[4:7], v{L16}, s[4:7], s69 offen offset:1024 sc1")
        for i in range(PD3): a("s_nop 15")
    a(f"s_branch L{tag}_p2")
    a.label(f"L{tag}_redo")
    a(f"s_sub_u32 s94, s94, 1\ns_cbranch_scc1 L{tag}_cont\ns_nop 15")
    for d in DD:
        for i in range(4): a(f"v_mov_b32 v{d+i}, 0")
    if ts: a("s_mov_b64 exec, 1\nv_mov_b32 v17, 1\nbuffer_atomic_add v17, off, s[8:11], 0 offset:44\ns_mov_b64 exec, -1")
    a(f"s_nop 1\ns_branch L{tag}_wo")
    a.label(f"L{tag}_end")
    for x in kmrd(): a(x)
    a(f"buffer_store_dwordx4 {vr(AV,4)}, v{L16}, s[4:7], s68 offen sc1\ns_waitcnt lgkmcnt(0)")
    a(f"buffer_store_dwordx4 {vr(SX,4)}, v{L16}, s[4:7], s67 offen sc1")
    a("s_waitcnt vmcnt(0)")
    if CYC: a(f"s_memtime s[86:87]\ns_waitcnt lgkmcnt(0)\ns_sub_u32 s86, s86, s84\nv_mov_b32 v8, s86\ns_lshl_b32 s37, s28, 2\ns_mov_b64 exec, 1\nbuffer_store_dword v8, off, s[8:11], s37 offset:128\ns_mov_b64 exec, -1")
    if merged: merged["final"](a, tag)
    else: a(f"s_memrealtime s[86:87]\ns_waitcnt lgkmcnt(0)\ns_sub_u32 s86, s86, s84\nv_mov_b32 v8, s86\ns_lshl_b32 s37, s28, 2\ns_mov_b64 exec, 1\nbuffer_store_dword v8, off, s[8:11], s37 offset:128\ns_endpgm")
```

```python
from common import *
from proj import *
from chain import f32
import os
SL1, SL2 = eval(os.environ.get("SL", "(8,16)"))
def attn(a, flags=True):
    lanes(a)
    a(f"""s_lshr_b32 s41, s40, 3
    s_and_b32 s42, s40, 7
    s_lshl_b32 s43, s42, 2
    s_add_u32 s43, s43, s29
    s_mov_b32 s44, s41
    s_lshl_b32 s50, s43, 7
    s_add_u32 s50, s50, {hex(WS_FL)}
    s_lshr_b32 s51, s40, 1
    s_lshl_b32 s51, s51, 7
    s_and_b32 s48, s40, 1
    s_add_u32 s51, s51, s48
    s_add_u32 s51, s51, {hex(WS_FL+0x2000)}
    s_mov_b32 s58, {f32(0.08838834764831845)}
    s_mov_b32 s59, {f32(1.4426950408889634)}
    s_mov_b32 s62, 0xffff0000
    v_lshlrev_b32 v5, 2, v3
    v_mov_b32 v7, 0xce6e6b28""")
    for i in range(4): a(f"v_add_u32 v6, {i}, v5\nv_cmp_le_u32 s[{64+2*i}:{65+2*i}], v6, v2")
    a(f"""s_add_u32 s48, s44, 56
    s_lshl_b32 s48, s48, 18
    s_lshl_b32 s49, s43, 12
    s_add_u32 s48, s48, s49
    s_add_u32 s48, s48, {hex(WS_O)}
    s_add_u32 s49, s48, 0x20000""")
    for i in range(4): a(f"v_mov_b32 v{16+i}, -1")
    for Tq in range(2):
        for w in range(4): a(f"buffer_store_dwordx4 v[16:19], v4, s[4:7], s{48+Tq} offen offset:{w*1024} sc1")
    if flags: poll(a, "L_at_pd", f"buffer_load_dword v8, off, s[8:11], 0 offset:{D_PD*4} sc1", "s_cmp_ge_u32 s56, 192", 8)
    Q, K, KM, V, VM = 16, 48, 80, 96, 128
    def qkv():
        a(f"""s_lshl_b32 s45, s44, 5
        s_add_u32 s45, s45, s43
        s_lshl_b32 s46, s45, 13
        s_lshl_b32 s47, s45, 12""")
        for base, ws in ((Q, WS_QX), (K, WS_KX), (V, WS_VX)):
            for hh in range(2):
                a(f"s_add_u32 s48, s46, {hex(ws + hh*4096)}")
                for i in range(4): a(f"buffer_load_dwordx4 {vr(base+hh*16+i*4,4)}, v4, s[4:7], s48 offen offset:{i*1024} sc1")
    qkv()
    a("s_mov_b32 s56, 0")
    a.label("L_at_loop")
    S = 144
    def sreg(Tq, tl): return S + (Tq*3+tl)*4
    def kmld():
        for base, ws in ((KM, WS_KM), (VM, WS_VM)):
            a(f"s_add_u32 s48, s47, {hex(ws)}")
            for i in range(4): a(f"buffer_load_dwordx4 {vr(base+i*4,4)}, v4, s[4:7], s48 offen offset:{i*1024} sc1")
    def sx():
        for ks in range(4):
            for Tq, tl in ((0, 0), (1, 0), (1, 1)):
                d = vr(sreg(Tq, tl), 4)
                a(f"v_mfma_f32_16x16x32_bf16 {d}, {vr(K+tl*16+ks*4,4)}, {vr(Q+Tq*16+ks*4,4)}, {'0' if ks == 0 else d}")
    a("s_min_u32 s52, s44, 60\ns_cmp_eq_u32 s44, 61\ns_cselect_b32 s52, 59, s52\ns_cmp_gt_u32 s56, s52\ns_cbranch_scc0 L_at_slow")
    kmld(); a("s_waitcnt vmcnt(8)"); sx()
    a("s_cmp_ge_u32 s44, 61\ns_cselect_b32 s57, 100000, 0\ns_branch L_at_chk")
    a.label("L_at_slow")
    a("s_waitcnt vmcnt(0)"); sx()
    poll(a, "L_at_cp", f"buffer_load_ubyte v8, off, s[4:7], s50 sc1", "s_cmp_gt_u32 s56, s52", SL1)
    a(f"s_cmp_ge_u32 s44, 61\ns_cselect_b32 s57, 100000, 0")
    a.label("L_at_ld")
    kmld()
    a.label("L_at_chk")
    a("v_mov_b32 v9, 0")
    for i in range(8):
        b = KM + 4*i if i < 4 else VM + 4*(i-4)
        a(f"s_waitcnt vmcnt({7-i})\nv_max3_u32 v9, v9, v{b}, v{b+1}\nv_max3_u32 v9, v9, v{b+2}, v{b+3}")
    a("v_cmp_eq_u32 vcc, -1, v9\ns_cbranch_vccz L_at_go\ns_sub_u32 s57, s57, 1\ns_cbranch_scc0 L_at_ld")
    a.label("L_at_go")
    for ks in range(4):
        for Tq in range(2):
            d = vr(sreg(Tq, 2), 4)
            a(f"v_mfma_f32_16x16x32_bf16 {d}, {vr(KM+ks*4,4)}, {vr(Q+Tq*16+ks*4,4)}, {'0' if ks == 0 else d}")
    a("s_nop 7")
    P = 168
    for Tq in range(2):
        tiles = (0, 2) if Tq == 0 else (0, 1, 2)
        rr = [sreg(Tq, tl) + i for tl in tiles for i in range(4)]
        def rnd():
            for x in rr[::2]: a(f"v_cvt_pk_bf16_f32 v{x+1}, v{x}, v{x+1}\nv_lshlrev_b32 v{x}, 16, v{x+1}\nv_and_b32 v{x+1}, s62, v{x+1}")
        rnd()
        for x in rr: a(f"v_mul_f32 v{x}, s58, v{x}")
        rnd()
        for i in range(4): a(f"v_cndmask_b32 v{sreg(Tq,Tq)+i}, v7, v{sreg(Tq,Tq)+i}, s[{64+2*i}:{65+2*i}]")
        a(f"v_max_f32 v9, v{rr[0]}, v{rr[1]}")
        for x in rr[2::2]: a(f"v_max3_f32 v9, v9, v{x}, v{x+1}")
        def xl(op):
            for sw in (16, 32): a(f"v_mov_b32 v10, v9\ns_nop 1\nv_permlane{sw}_swap_b32 v9, v10\ns_nop 1\n{op} v9, v9, v10")
        xl("v_max_f32")
        for x in rr: a(f"v_sub_f32 v{x}, v{x}, v9")
        for x in rr: a(f"v_mul_f32 v{x}, s59, v{x}")
        for x in rr: a(f"v_exp_f32 v{x}, v{x}")
        m = rr[-4:]
        a(f"v_add_f32 v9, v{m[0]}, v{m[1]}\nv_add_f32 v9, v9, v{m[2]}\nv_add_f32 v9, v9, v{m[3]}\nv_mul_f32 v9, 0.5, v9")
        for x in rr[:-4]: a(f"v_add_f32 v9, v9, v{x}")
        xl("v_add_f32")
        a("v_rcp_f32 v9, v9\ns_nop 0")
        for x in rr: a(f"v_mul_f32 v{x}, v{x}, v9")
        for tl in range(3):
            for i in range(2):
                d = P + Tq*8 + tl*2 + i
                if tl in tiles: a(f"v_cvt_pk_bf16_f32 v{d}, v{sreg(Tq,tl)+2*i}, v{sreg(Tq,tl)+2*i+1}")
                else: a(f"v_mov_b32 v{d}, 0")
    a(f"""s_lshl_b32 s48, s44, 18
    s_lshl_b32 s49, s43, 12
    s_add_u32 s48, s48, s49
    s_add_u32 s48, s48, {hex(WS_O)}
    s_add_u32 s49, s48, 0x20000
    s_waitcnt vmcnt(0)""")
    O = 184
    for Tq in range(2):
        for e in range(8): a(f"v_mfma_f32_16x16x32_bf16 {vr(O+Tq*32+e*4,4)}, {vr(V+e*4,4)}, {vr(P+Tq*8,4)}, 0")
        for e in range(8): a(f"v_mfma_f32_16x16x16_bf16 {vr(O+Tq*32+e*4,4)}, {vr(VM+e*2,2)}, {vr(P+Tq*8+4,2)}, {vr(O+Tq*32+e*4,4)}")
    a("s_nop 7")
    for Tq in range(2):
        for w in range(4):
            b = O+Tq*32+w*8
            for i in range(4): a(f"v_cvt_pk_bf16_f32 v{b+i}, v{b+i}, v{b+4+i}")
            a(f"buffer_store_dwordx4 {vr(b,4)}, v4, s[4:7], s{48+Tq} offen offset:{w*1024} sc1")
    a("s_add_u32 s44, s44, 8\ns_cmp_lt_u32 s44, 64\ns_cbranch_scc1 L_at_nx\ns_waitcnt vmcnt(0)\ns_branch L_at_fl")
    a.label("L_at_nx")
    qkv()
    a("s_waitcnt vmcnt(24)")
    a.label("L_at_fl")
    if flags:
        a(f"""s_barrier
        s_cmp_lg_u32 s29, 0
        s_cbranch_scc1 L_at_nf
        s_lshr_b32 s48, s44, 3
        s_mov_b64 exec, 1
        v_mov_b32 v8, s48
        buffer_store_byte v8, off, s[4:7], s51 sc1
        s_mov_b64 exec, -1""")
        a.label("L_at_nf")
    a("s_cmp_lt_u32 s44, 64\ns_cbranch_scc1 L_at_loop\ns_waitcnt vmcnt(0)\ns_endpgm")

def oproj(a, flags=True):
    lanes(a)
    srd(a, 12, "Wo"); srd(a, 16, "out")
    a("""s_lshr_b32 s44, s40, 4
    s_and_b32 s42, s40, 15
    s_mov_b32 s64, 0x00ff00ff
    s_add_u32 s45, s44, 118
    s_cmp_ge_u32 s44, 8
    s_cselect_b32 s44, s45, s44
    s_cselect_b32 s64, 0xff00ff00, s64
    s_cselect_b32 s66, 128, 0
    s_mov_b32 s65, s64
    v_lshlrev_b32 v6, 13, v3
    v_lshl_add_u32 v6, v2, 2, v6
    s_lshl_b32 s46, s29, 20
    s_lshl_b32 s47, s42, 6
    s_add_u32 s46, s46, s47
    v_lshlrev_b32 v5, 11, v2
    v_lshl_add_u32 v5, v3, 4, v5
    v_add_u32 v5, s47, v5
    s_waitcnt lgkmcnt(0)""")
    load_frags(a, 12, 6, 1024, 46, 32, lambda ks, t: ("a", (ks*2+t)*4))
    a("s_lshl_b32 s50, s29, 11\ns_mov_b32 s51, 0\ns_mov_b32 s46, 0\ns_mov_b32 s47, 0\ns_add_u32 s48, s66, 3952\nv_lshlrev_b32 v10, 12, v1\nv_add_u32 v10, s48, v10\ns_barrier")
    a.label("L_op_loop")
    a(f"""s_lshr_b32 s45, s44, 1
    s_mov_b32 s54, s44
    s_cmp_ge_u32 s44, 126
    s_cselect_b64 s[52:53], s[64:65], -1
    s_and_b32 s48, s45, 7
    s_lshl_b32 s48, s48, 2
    s_add_u32 s48, s48, s29
    s_lshl_b32 s48, s48, 7
    s_add_u32 s48, s48, {hex(WS_FL+0x2000)}
    s_lshr_b32 s49, s45, 3
    s_cmp_ge_u32 s45, 62
    s_cselect_b32 s49, 6, s49
    s_cmp_gt_u32 s46, s49
    s_cbranch_scc1 L_op_sk""")
    if flags: poll(a, "L_op_w", f"buffer_load_ushort v8, off, s[4:7], s48 sc1",
                   "s_and_b32 s58, s56, 0xff\ns_lshr_b32 s56, s56, 8\ns_min_u32 s56, s56, s58\ns_cmp_gt_u32 s56, s49", SL2)
    a("s_mov_b32 s46, s56")
    a.label("L_op_sk")
    a(f"s_lshl_b32 s55, s54, 17\ns_lshl_b32 s49, s29, 15\ns_add_u32 s55, s55, s49\ns_add_u32 s55, s55, {hex(WS_O)}")
    a("s_cmp_lt_u32 s45, 62\ns_cselect_b32 s57, 0, 100000\ns_cbranch_scc1 L_op_ld")
    a.label("L_op_sp")
    a("""s_mov_b64 exec, 0xff
    buffer_load_dword v8, v10, s[4:7], s55 offen sc1
    s_waitcnt vmcnt(0)
    v_cmp_eq_u32 vcc, -1, v8
    s_cbranch_vccz L_op_ld
    s_sub_u32 s57, s57, 1
    s_cbranch_scc0 L_op_sp
    s_mov_b32 s57, 0""")
    a.label("L_op_ld")
    a("s_mov_b64 exec, s[52:53]\ns_mov_b32 s48, s55\nv_mov_b32 v11, 0")
    def old(sc):
        for i in range(32):
            if i % 4 == 0 and i: a("s_add_u32 s48, s48, 4096")
            a(f"buffer_load_dwordx4 {vr(128+i*4,4)}, v4, s[4:7], s48 offen offset:{(i%4)*1024}{sc}")
    if os.environ.get("OC", "1") == "1":
        a("s_cmp_ge_u32 s45, 62\ns_cbranch_scc1 L_op_l1")
        old(""); a("s_branch L_op_l2")
        a.label("L_op_l1")
    old(" sc1")
    a.label("L_op_l2")
    for ks in range(32):
        a(f"s_waitcnt vmcnt({31-ks})")
        for t in range(2):
            d = vr(16+t*4, 4)
            a(f"v_mfma_f32_16x16x32_bf16 {d}, {ar((ks*2+t)*4,4)}, {vr(128+ks*4,4)}, {'0' if ks == 0 else d}")
            a(f"v_max3_u32 v11, v11, v{128+ks*4+2*t}, v{129+ks*4+2*t}")
    a("v_cmp_eq_u32 vcc, -1, v11\ns_cbranch_vccz L_op_go\ns_sub_u32 s57, s57, 1\ns_cbranch_scc0 L_op_sp")
    a.label("L_op_go")
    a("""v_add_u32 v7, s51, v4
    v_add_u32 v9, s50, v7
    s_xor_b32 s51, s51, 0x2000
    s_nop 5
    ds_write_b128 v9, v[16:19]
    ds_write_b128 v9, v[20:23] offset:1024
    s_waitcnt lgkmcnt(0)
    s_barrier
    s_cmp_lg_u32 s29, 0
    s_cbranch_scc1 L_op_next""")
    for w in range(1, 4):
        for t in range(2): a(f"ds_read_b128 {vr(16+w*8+t*4,4)}, v7 offset:{w*2048+t*1024}")
    a("s_waitcnt lgkmcnt(0)")
    for w in range(1, 4):
        for i in range(8): a(f"v_add_f32 v{16+i}, v{16+i}, v{16+w*8+i}")
    for i in range(4): a(f"v_cvt_pk_bf16_f32 v{48+i}, v{16+i}, v{20+i}")
    a("s_lshl_b32 s48, s54, 15\nbuffer_store_dwordx4 v[48:51], v5, s[16:19], s48 offen")
    a.label("L_op_next")
    a("s_mov_b32 s58, s46\ns_mov_b32 s46, s47\ns_mov_b32 s47, s58\ns_mov_b64 exec, -1\ns_add_u32 s44, s44, 8\ns_cmp_lt_u32 s44, 128\ns_cbranch_scc1 L_op_loop\ns_waitcnt vmcnt(0)\ns_endpgm")
```

```python
from common import *
L_KX, L_MEM, L_Q, L_W = 0, 16384, 24576, 32768
L_O = L_Q + 3072
QSTR, KOFF, QX4 = 576, 256, 4128
LDS_CHAIN = 163840
SPIN = 20000
import os, re
PB1, PB2, PB3, PB4, PS, PW = eval(os.environ.get('PB', '(4, 35, 47, 0, (1,2,3,3,4,7,8), 41)'))
PV1, PD1, PD4, PV2, PD2, PD3 = eval(os.environ.get('PRM', '(0, 72, 0, 2, 2, 2)'))
LW = int(os.environ.get('LW', 0))
CYC = int(os.environ.get('CYC', 0))
CH = eval(os.environ.get('CH', '(4, 10)'))
CEXP = 0.08838834764831845 * 1.4426950408889634
import struct
def f32(x): return hex(struct.unpack("<I", struct.pack("<f", x))[0])

def roles(a, nchain_label, exit_label):
    a(f"""s_cmp_ge_u32 s2, 256
    s_cbranch_scc1 {exit_label}""")
    srd(a, 4, "ws"); srd(a, 8, "dbg")
    a("""s_getreg_b32 s31, hwreg(HW_REG_XCC_ID)
    s_and_b32 s31, s31, 7
    v_readfirstlane_b32 s29, v0
    s_lshr_b32 s29, s29, 6
    s_waitcnt lgkmcnt(0)
    s_cmp_lg_u32 s29, 0
    s_cbranch_scc1 L_role_wait
    s_mov_b64 exec, 1
    s_mov_b32 s32, 0
    v_mov_b32 v3, 0""")
    a.label("L_role_try")
    a("""s_add_u32 s33, s31, s32
    s_and_b32 s33, s33, 7
    s_lshl_b32 s34, s33, 2
    """ + ("s_cselect_b32 s34, s34, 192" if os.environ.get("TK", "1") == "1" else "") + """
    v_mov_b32 v1, 1
    buffer_atomic_add v1, off, s[8:11], s34 sc0
    s_waitcnt vmcnt(0)
    v_readfirstlane_b32 s35, v1
    s_cmp_lt_u32 s35, 32
    s_cbranch_scc1 L_role_got
    s_add_u32 s32, s32, 1
    s_cmp_lt_u32 s32, 8
    s_cbranch_scc1 L_role_try
    s_mov_b32 s33, 8
    s_mov_b32 s35, 0""")
    a.label("L_role_got")
    a("""s_lshl_b32 s33, s33, 5
    s_add_u32 s33, s33, s35
    s_lshl_b32 s32, s32, 16
    s_or_b32 s33, s33, s32
    v_mov_b32 v1, s33
    ds_write_b32 v3, v1
    s_mov_b64 exec, -1
    s_waitcnt lgkmcnt(0)""")
    a.label("L_role_wait")
    a(f"""s_barrier
    v_mov_b32 v3, 0
    ds_read_b32 v1, v3
    s_waitcnt lgkmcnt(0)
    v_readfirstlane_b32 s30, v1
    s_barrier
    s_lshr_b32 s36, s30, 16
    s_and_b32 s30, s30, 0xffff
    s_cmp_ge_u32 s30, 256
    s_cbranch_scc1 {exit_label}
    s_cmp_ge_u32 s30, 32
    s_cbranch_scc1 {nchain_label}""")

A0, AQ, AK, AV, KXR, QF, VX, SX = 0, 32, 40, 48, 56, 88, 104, 112
IDX, L16, WOB, QKW, QKR, INS, OX, MST = 120, 121, 122, 123, 124, 125, 126, 127
INL = 25
SEQ = [(m, sg, t) for m in (0, 1, 2) for sg in (0, 1) for t in (0, 1)] + [(m, sg, t) for m in (0, 1, 2) for sg in range(2, 8) for t in (0, 1)]
RING = {0: (8, None), 1: (16, None), 2: (QF, None), 3: (QF+8, None), 16: (QF, 8), 18: (QF+8, 10), 20: (SX, 12), 24: (QF, 16), 26: (QF+8, 18),
        28: (SX, 20), 32: (QF, 24), 34: (QF+8, 26), 36: (SX, 28)}
WRING = {0: (8, 40), 1: (KXR+8, 50), 2: (KXR+24, 52)}
LOC = {}; STG = {}
_l = 0; _r = 0
for i, k in list(enumerate(SEQ)) + [(100+op, (3, op >> 1, op & 1)) for op in range(16)]:
    rg = RING.get(i) if i < 100 else WRING.get(i - 100)
    if rg: LOC[k] = ('l', _l); STG[k] = rg; _l += 1
    else: LOC[k] = ('a', _r*8) if _r < 32 else ('v', 128 + (_r-32)*8); _r += 1
assert _l == 16 and _r == 48
def wreg(k):
    c, r = LOC[k]
    return vr(STG[k][0], 8) if c == 'l' else vr(r, 8, c)
def wrd(k): return [f"ds_read_b128 {vr(STG[k][0]+4*i,4)}, v{WOB} offset:{LOC[k][1]*2048+i*1024}" for i in (0, 1)]

def dma():
    o = [f"buffer_load_dwordx4 v{L16}, s[4:7], s{65+(i>>1)} offen offset:{i*1024} sc1 lds" for i in range(4)]
    return o + [f"s_add_u32 s{sg}, s{sg}, {32*8192}" for sg in (65, 66)]

def TSR(i): return 80+2*i if i < 7 else 16
class Em:
    def __init__(s, a): s.a = a; s.pend = []
    def need(s, lns):
        k = None
        for ln in lns:
            if ln.endswith(":"): continue
            c = classify(ln); use = c["r"] | c["w"]
            for i, w in enumerate(s.pend):
                if w & use: k = min(k, len(s.pend)-1-i) if k is not None else len(s.pend)-1-i
        if k is not None: s.raw(f"s_waitcnt lgkmcnt({min(k, 15)})")
    def raw(s, ln):
        s.a(ln)
        m = re.search(r"lgkmcnt\((\d+)\)", ln)
        if m: n = int(m.group(1)); s.pend = s.pend[len(s.pend)-n:] if n else []
        if ln.startswith("ds_"): s.pend.append(classify(ln)["w"])
    def __call__(s, txt):
        for ln in txt.split("\n"):
            ln = ln.strip()
            if ln: s.need([ln]); s.raw(ln)
    def gaps(s, main, X, V, T={}):
        for i, m in enumerate(main):
            s(m)
            for x in X.get(i, []): s(x)
            s.need(V.get(i, []) + main[i+1:i+2])
            for x in V.get(i, []): s(x)
            if i in T: T[i]()

def chain(a, ts=False, merged=False, nsteps=64):
    a("s_mov_b32 s28, s30")
    if ts and 'rt' in ts: a("s_memrealtime s[80:81]")
    srd(a, 12, "Wq"); srd(a, 16, "Wk"); srd(a, 20, "Wv"); srd(a, 24, "Wo"); srd(a, 40, "mem0")
    a(f"""v_and_b32 v1, 63, v0
    v_lshlrev_b32 v{L16}, 4, v1
    v_and_b32 v2, 15, v1
    v_lshrrev_b32 v3, 4, v1
    s_lshl_b32 s37, s29, 15
    s_add_u32 s37, s37, {L_W}
    v_add_u32 v{WOB}, s37, v{L16}
    v_mov_b32 v4, 0x4444
    v_mov_b32 v5, 0xeeee
    v_and_b32 v6, 2, v2
    v_cmp_eq_u32 vcc, 0, v6
    s_nop 1
    v_cndmask_b32 v{IDX}, v5, v4, vcc""")
    a(f"""v_and_b32 v4, 1, v3
    v_mul_u32_u24 v4, {2*QSTR}, v4
    v_lshl_add_u32 v4, v2, 2, v4
    v_lshrrev_b32 v5, 1, v3
    v_mul_u32_u24 v5, {QX4}, v5
    v_xor_b32 v4, v4, v5
    s_lshl_b32 s37, s29, 6
    s_add_u32 s37, s37, {L_Q}
    v_add_u32 v{QKW}, s37, v4""")
    a(f"""v_lshrrev_b32 v4, 2, v2
    v_and_b32 v5, 1, v2
    v_lshl_add_u32 v12, v4, 1, v5
    v_and_b32 v4, 3, v12
    v_mul_u32_u24 v4, {QSTR}, v4
    v_lshl_add_u32 v4, v3, 4, v4
    v_lshrrev_b32 v5, 2, v12
    v_mul_u32_u24 v5, {QX4}, v5
    v_xor_b32 v4, v4, v5
    v_add_u32 v{QKR}, {L_Q}, v4""")
    a(f"""v_lshrrev_b32 v5, 2, v2
    v_lshl_add_u32 v4, v5, 2, v3
    v_lshlrev_b32 v4, 11, v4
    v_and_b32 v5, 3, v2
    v_lshl_add_u32 v4, v5, 4, v4
    s_lshl_b32 s37, s29, 16
    s_lshl_b32 s38, s28, 6
    s_add_u32 s37, s37, s38
    v_add_u32 v{INS}, s37, v4""")
    a(f"""v_lshl_add_u32 v4, v3, 2, v5
    v_lshlrev_b32 v4, 6, v4
    v_lshrrev_b32 v5, 2, v2
    v_lshl_add_u32 v4, v5, 4, v4
    s_lshl_b32 s37, s28, 2
    s_add_u32 s37, s37, s29
    s_lshl_b32 s38, s37, 11
    s_mov_b32 s74, s38
    v_add_u32 v{INL}, s38, v4""")
    a(f"""v_lshlrev_b32 v4, 4, v2
    v_lshl_add_u32 v4, v3, 2, v4
    s_lshl_b32 s100, s37, 6
    v_add_u32 v{MST}, s100, v4""")
    a("v_cmp_gt_u32 s[44:45], 4, v2")
    a("v_and_b32 v4, 1, v2\nv_lshrrev_b32 v5, 2, v2\nv_lshl_add_u32 v5, v4, 2, v5\nv_lshrrev_b32 v4, 1, v5")
    for i in range(4): a(f"v_cmp_eq_u32 s[{46+2*i}:{47+2*i}], {i}, v4")
    a("v_and_b32 v4, 1, v5\nv_cmp_eq_u32 s[54:55], 1, v4")
    a("v_mov_b32 v8, -1\nv_mov_b32 v9, -1\nv_mov_b32 v10, -1\nv_mov_b32 v11, -1")
    a(f"s_mov_b32 s56, {hex(WS_INBOX)}\ns_mov_b32 s57, {hex(WS_INBOX+0x40000)}\ns_waitcnt lgkmcnt(0)")
    for sl in (56, 57):
        for o in (0, 1024): a(f"buffer_store_dwordx4 v[8:11], v{INL}, s[4:7], s{sl} offen offset:{o} sc1")
    a("s_lshl_b32 s56, s28, 12\ns_lshl_b32 s57, s29, 10\ns_add_u32 s56, s56, s57")
    for b in (WS_KM, WS_VM):
        for sg in (61, 62, 63): a(f"s_add_u32 s57, s56, {hex(b + sg*32*4096)}\nbuffer_store_dwordx4 v[8:11], v{L16}, s[4:7], s57 offen sc1")
    a("s_mov_b64 exec, s[44:45]")
    for sl in range(4):
        a(f"s_mov_b32 s58, {hex(WS_MEMF + sl*8192)}\nbuffer_store_dword v8, v{MST}, s[4:7], s58 offen sc1")
    a(f"s_mov_b64 exec, 1\nv_mov_b32 v9, 0\ns_lshl_b32 s98, s28, 7\ns_add_u32 s98, s98, {hex(WS_FL)}")
    for i in range(3): a(f"s_add_u32 s58, s98, {i*0x1000}\nbuffer_store_dword v9, off, s[4:7], s58 sc1")
    a("s_add_u32 s95, s98, 0x1000\ns_mov_b64 exec, -1\ns_nop 1")
    a("""s_lshl_b32 s38, s29, 2
    v_xor_b32 v6, s38, v2
    v_lshlrev_b32 v6, 4, v6
    v_lshl_add_u32 v6, v3, 13, v6
    s_and_b32 s37, s29, 1
    s_lshr_b32 s38, s29, 1
    s_lshl2_add_u32 s59, s38, s37
    s_lshl_b32 s37, s59, 15
    s_lshl_b32 s38, s28, 8
    s_add_u32 s37, s37, s38
    v_add_u32 v6, s37, v6
    s_lshl_b32 s59, s59, 10
    v_lshlrev_b32 v7, 12, v3
    v_lshl_add_u32 v7, v2, 3, v7
    s_lshl_b32 s37, s28, 17
    s_lshl_b32 s38, s29, 8
    s_add_u32 s37, s37, s38
    v_add_u32 v7, s37, v7
    v_lshrrev_b32 v4, 1, v3
    v_and_b32 v5, 1, v3
    v_lshl_add_u32 v4, v4, 2, v5
    v_lshlrev_b32 v4, 10, v4
    v_xor_b32 v5, s29, v3
    v_lshl_add_u32 v4, v5, 6, v4
    v_lshl_add_u32 v4, v2, 2, v4
    s_lshl_b32 s37, s29, 13
    v_add_u32 v8, s37, v4
    v_xor_b32 v9, 0x2000, v8
    v_xor_b32 v10, 0x4000, v8
    v_xor_b32 v11, 0x6000, v8
    s_mov_b32 s60, 0x05040100
    s_mov_b32 s61, 0x07060302""")
    e = Em(a); vq = []
    def vwait(tag): a(f"s_waitcnt vmcnt({len(vq) - 1 - max(i for i, x in enumerate(vq) if x == tag)})")
    groups = [(m, c, hb) for m in range(3) for c in range(2) for hb in range(2)]
    park = dict(zip([k for k in SEQ if LOC[k][0] == 'l'], [LOC[k][1] for k in LOC if k[0] == 3 and LOC[k][0] == 'v']))
    assert len(park) == 13
    def gissue(gi):
        m, c, hb = groups[gi]
        for j in range(4):
            for q in range(2):
                a(f"s_add_u32 m0, s59, {(gi % 5)*32768 + j*8192 + q*2048}\ns_mov_b32 s63, {((2*j+c)*64 + hb*32 + q*8)*8192}")
                a(f"buffer_load_dwordx4 v6, s[{12+4*m}:{15+4*m}], s63 offen lds"); vq.append(("g", gi))
    def gread(gi, j):
        st = 96 + (j % 3)*8; o = (gi % 5 & 1)*128
        for r in range(4):
            row = 8*(r & 1) + 2*(r >> 1) + o
            e(f"ds_read2st64_b32 {vr(st+2*r,2)}, v{8+j} offset0:{row} offset1:{row+1}")
    def gcons(gi, j):
        m, c, hb = groups[gi]; st = 96 + (j % 3)*8
        for t in range(2):
            k = (m, 2*j+c, t); kd, rr = LOC[k]
            if kd == 'l': kd, rr = 'v', park[k]
            for r in range(4): e(f"v_perm_b32 v{rr+4*hb+r if kd == 'v' else 12+r}, v{st+2*r+1}, v{st+2*r}, s{60+t}")
            if kd == 'a':
                for r in range(4): e(f"v_accvgpr_write_b32 a{rr+4*hb+r}, v{12+r}")
    NS = 5
    def issue(bi):
        base = 16 + (bi % NS) * 16
        a(f"s_xor_b32 s62, s29, {bi >> 1}\ns_lshl_b32 s62, s62, 15")
        for x in range(8):
            a(f"s_add_u32 s63, s62, {(16*(x >> 2) + (x & 3))*1024 + (bi & 1)*128}")
            a(f"buffer_load_dwordx2 {vr(base+2*x,2)}, v7, s[24:27], s63 offen"); vq.append(("w", bi))
    def consume(bi):
        base = 16 + (bi % NS) * 16
        for t in range(2):
            kd, rr = LOC[(3, bi, t)]
            for rho in range(8):
                sr_ = base + (rho >> 1)*4 + (rho & 1)
                e(f"v_perm_b32 v{rr+rho if kd == 'v' else 96+t*8+rho}, v{sr_+2}, v{sr_}, s{60+t}")
            if kd == 'l':
                for i in range(2): e(f"ds_write_b128 v{WOB}, {vr(96+t*8+4*i,4)} offset:{rr*2048 + i*1024}")
                e("s_waitcnt lgkmcnt(0)")
    a("v_mov_b32 v5, v12")
    for gi in range(5): gissue(gi)
    a('s_waitcnt vmcnt(40)\ns_barrier')
    a("""s_cmp_lg_u32 s29, 0
    s_cbranch_scc1 L_ch_noinc
    s_cmp_lg_u32 s36, 0
    s_cselect_b32 s58, 0x10001, 1
    s_mov_b64 exec, 1
    v_mov_b32 v13, s58
    buffer_atomic_add v13, off, s[8:11], 0 offset:32
    s_mov_b64 exec, -1""")
    a.label("L_ch_noinc")
    vq.insert(0, 0)
    for gi in range(12):
        vwait(("g", gi)); a("s_barrier")
        if 1 <= gi and gi + 4 < 12: gissue(gi + 4)
        if gi >= 7: issue(gi - 7)
        d = ((gi % 5) >> 1) - (((gi-1) % 5) >> 1) if gi else 0
        if d:
            for j in range(4): a(f"v_add_u32 v{8+j}, {hex((d*65536) & 0xffffffff)}, v{8+j}")
        gread(gi, 0); gread(gi, 1)
        for j in range(4):
            if j + 2 < 4: gread(gi, j + 2)
            gcons(gi, j)
    a("s_barrier\nv_mov_b32 v12, v5")
    for k, rr in park.items():
        for i in range(2): a(f"ds_write_b128 v{WOB}, {vr(rr+4*i,4)} offset:{LOC[k][1]*2048 + i*1024}")
    a("s_waitcnt lgkmcnt(0)")
    for bi in range(8):
        vwait(("w", bi)); consume(bi)
        if bi + NS < 8: issue(bi + NS)
    if ts and 'rt' in ts: a("s_memrealtime s[82:83]")
    a(f"""s_lshl_b32 s37, s28, 13
    s_lshl_b32 s38, s29, 11
    s_add_u32 s37, s37, s38
    s_add_u32 s65, s37, {hex(WS_KX)}
    s_add_u32 s66, s37, {hex(WS_VX-2048)}
    s_lshr_b32 s37, s37, 1
    s_add_u32 s67, s37, {hex(WS_KM)}
    s_add_u32 s68, s37, {hex(WS_VM)}
    s_lshl_b32 s73, s38, 1
    s_mov_b32 m0, s73
    s_mov_b32 s64, 0
    s_mov_b32 s72, {hex(WS_INBOX)}""")
    if merged: merged["wait_proj"](a, 1)
    a(f"s_sub_u32 s67, s67, {32*4096}\ns_sub_u32 s68, s68, {32*4096}")
    for x in dma(): a(x)
    a("""v_lshlrev_b32 v4, 10, v12
    v_lshl_add_u32 v4, v3, 5, v4
    v_and_b32 v5, 2, v2
    v_cmp_ne_u32 s[12:13], 0, v5
    v_lshl_add_u32 v4, v5, 3, v4
    s_lshl_b32 s37, s29, 8
    buffer_load_dwordx4 v[8:11], v4, s[40:43], s37 offen
    buffer_load_dwordx4 v[12:15], v4, s[40:43], s37 offen offset:128""")
    for i in range(2):
        a(f"s_add_u32 s37, s74, {hex(WS_INBOX + i*0x40000)}")
        for o in (0, 1024): a(f"buffer_load_dwordx4 v[16:19], v{L16}, s[4:7], s37 offen offset:{o}")
    a("s_lshl_b32 s38, s29, 11")
    for i in range(4):
        a(f"s_add_u32 s37, s38, {hex(WS_MEMF + i*8192)}")
        for o in (0, 1024): a(f"buffer_load_dwordx4 v[16:19], v{L16}, s[4:7], s37 offen offset:{o}")
    a(f"s_mov_b32 s75, {SPIN*10}")
    a.label("L_ch_rdy")
    a("""buffer_load_dword v16, off, s[8:11], 0 offset:32 sc1
    s_waitcnt vmcnt(0)
    v_readfirstlane_b32 s37, v16
    s_and_b32 s38, s37, 0xffff
    s_sub_u32 s75, s75, 1
    s_cselect_b32 s38, 32, s38
    s_cmp_lt_u32 s38, 32
    s_cbranch_scc1 L_ch_rdy
    s_barrier""")
    if ts and 'rt' in ts or not merged: a("s_memrealtime s[84:85]")
    if CYC: a("s_memtime s[84:85]")
    for i in range(8): a(f"v_mov_b32 v{i}, v{8+i}")
    a(f"s_lshl_b32 s76, s29, 11\ns_add_u32 s77, s76, {L_MEM}\ns_mov_b32 s78, {f32(CEXP)}\ns_lshl_b32 s79, s29, 6")
    a(f"s_lshr_b32 s38, s29, 1\ns_lshl_b32 s38, s38, 7\ns_and_b32 s94, s29, 1\ns_add_u32 s38, s38, s94\ns_lshl_b32 s38, s38, 5\ns_add_u32 s38, s38, {L_O}\ns_mov_b32 s94, 100000\nv_and_b32 v{OX}, 0x3df, v{L16}\nv_add_u32 v{OX}, s38, v{OX}\ns_not_b64 s[14:15], s[12:13]\ns_mov_b32 s101, 0\ns_mov_b32 s39, 0")
    a("s_lshr_b32 s37, s37, 16\ns_cmp_lg_u32 s37, 0\ns_cbranch_scc1 L_slow_entry")
    loop(a, "f", "", ts, merged, nsteps)
    a.label("L_slow_entry")
    loop(a, "s", " sc1", False, merged, nsteps)


def loop(a, tag, sc, ts, merged, nsteps):
    def T(i):
        if ts and i in ts: a(f"s_memtime s[{TSR(i)}:{TSR(i)+1}]" if 'w' not in ts else f"s_memrealtime s[{TSR(i)}:{TSR(i)+1}]")
        if ts and i == 7 and 'rt' in ts: a("s_memrealtime s[92:93]")
    e = Em(a)
    MB = 28
    def kmrd(): return [f"v_add_u32 v24, s79, v{QKR}", f"ds_read_b128 {vr(SX,4)}, v24 offset:{KOFF}"]
    def preA():
        o = [f"v_add_u32 v{MB}, s77, v{L16}", f"v_add_u32 v26, s73, v{L16}"] + kmrd()
        o += [f"ds_read_b128 {vr(KXR+4*i,4)}, v{L16} offset:{(i>>1)*4096+(i&1)*1024}" for i in range(8)]
        o += [f"ds_read_b128 {vr(VX+4*t,4)}, v26 offset:{2048+t*1024}" for t in range(2)]
        for g in range(4): o += wrd(SEQ[g])
        for i in range(4): o.append(f"v_mov_b32 v{SX+4+i}, v{AV+i}")
        for i in range(8): o.append(f"v_mov_b32 v{AV+i}, 0")
        for j in (1, 2, 3): o.append(f"v_xor_b32 v{MB+j}, {j*2048}, v{MB}")
        return o + ["v_mov_b32 v27, s101", "s_waitcnt lgkmcnt(0)", "s_barrier"]
    def preB(chk=True): return [f"v_mov_b32 v{AK+4+i}, -1" for i in range(4)] + [f"ds_write_b128 v{OX}, {vr(AK+4,4)}"] + [f"v_mov_b32 v{AQ+i}, 0" for i in range(16)] + (merged["wait_proj_loop"](tag) if merged and chk else [])
    def add(d, g, l): d.setdefault(g, []).extend(l)
    for x in preA() + preB(False): a(x)
    a(f"s_mov_b64 s[56:57], 0\ns_branch L{tag}_ent")
    dw = f"L{tag}_ent:\nds_write_b128 v{MB}, v[0:3]\nds_write_b128 v{MB}, v[4:7] offset:1024\n"
    c1 = "v_cmp_eq_u32 s[58:59], -1, v0\nv_cmp_eq_u32 s[62:63], -1, v4\n"; c2 = c1.replace("v0", "v24").replace("v4\n", "v26\n")
    mx = "v_max3_u32 v24, v0, v1, v2\nv_max3_u32 v26, v4, v5, v6\nv_max_u32 v24, v24, v3\nv_max_u32 v26, v26, v7\n"
    P2V = int(os.environ.get('P2V', 0))
    P2C = [c1 + f"L{tag}_ent:", c1 + dw, mx + dw + c2, mx + c2 + dw, "v_max_u32 v24, v0, v3\nv_max_u32 v26, v4, v7\n" + c2 + dw][P2V]
    AL = int(os.environ.get('AL', 8))
    if AL >= 0:
        a(".p2align 6")
        for i in range(AL): a("s_nop 0")
    a.label(f"L{tag}_p2")
    a(f"""s_mov_b64 exec, s[58:59]
    buffer_load_dwordx4 v[0:3], v{L16}, s[4:7], s69 offen sc1
    s_mov_b64 exec, s[62:63]
    buffer_load_dwordx4 v[4:7], v{L16}, s[4:7], s69 offen offset:1024 sc1
    s_mov_b64 exec, -1
    s_sub_u32 s75, s75, 1
    s_cselect_b64 s[56:57], 0, -1
    s_waitcnt vmcnt({PV2})
    {P2C}
    s_or_b64 vcc, s[58:59], s[62:63]
    s_and_b64 vcc, vcc, s[56:57]
    s_cbranch_vccnz L{tag}_p2""")
    a.label(f"L{tag}_body")
    T(0)
    def sm(k):
        mat, sg, t = k; acc = (AQ, AK, AV)[mat] + 4*t
        return f"v_smfmac_f32_16x16x64_bf16 {vr(acc,4)}, {vr(A0+4*sg,4)}, {wreg(k)}, v{IDX}"
    def mf(d, x, y, c): return f"v_mfma_f32_16x16x32_bf16 {vr(d,4)}, {vr(x,4)}, {vr(y,4)}, {c}"
    def mf16(d, x, y, c): return f"v_mfma_f32_16x16x16_bf16 {vr(d,4)}, {vr(x,2)}, {vr(y,2)}, {c}"
    KF = [KXR, KXR+4, KXR+16, KXR+20]
    SM, HALF, MX, T1, ONE, LA, OA, PK = AK, AK+4, AK+6, AK+7, 16, 20, 24, AK
    DD = [0, 4, AQ, AQ+4]
    main = [sm(k) for k in SEQ[:42]]
    main += [mf(SX+4*Tt, KXR+16*Tt+4*ks, QF+4*ks, "0" if ks == 0 else vr(SX+4*Tt, 4)) for ks in range(4) for Tt in (0, 1)]
    main += [sm(k) for k in SEQ[42:]]
    main += [mf(SM, KF[ks], QF+4*ks, "0" if ks == 0 else vr(SM, 4)) for ks in range(4)]
    rdA = [f"ds_read_b128 {vr(A0+4*sg,4)}, v{MB+(sg>>1)} offset:{(sg&1)*1024}" for sg in range(2, 8)]
    dm = dma()
    X = {} if P2V else {0: dw.split('\n')[1:3]}
    V = {}
    add(X, PB1, ["s_waitcnt lgkmcnt(0)", "s_barrier"] + rdA[:2]); add(X, PB1+1, rdA[2:4]); add(X, PB1+2, rdA[4:6])
    vm = dm[:4] + (merged["flagld"] if merged else []) + [f"buffer_store_dwordx4 {vr(SX+4*i,4)}, v{L16}, s[4:7], s{67+i} offen sc1" for i in (0, 1)]
    for g, x in zip(PS, vm): X[g] = [x] + X.get(g, []) if g == PB1 else X.get(g, []) + [x]
    add(X, 22, dm[4:]); add(X, 30, [f"s_add_u32 s67, s67, {32*4096}", f"s_add_u32 s68, s68, {32*4096}"])
    add(X, PW, [f"s_waitcnt vmcnt({8 if merged else 6})"])
    if merged: add(X, PB1+1, merged["flag"](tag)); assert PS[4] <= PB1
    for k, (r, g) in STG.items():
        if g is not None: add(X, g, wrd(k)[:1]); add(X, g+1, wrd(k)[1:])
    for i in range(8): add(V, (list(range(PW, 25)) + [47, 48, 49, 45, 47, 48, 49, 45])[i], [f"v_mov_b32 v{i}, 0"])
    def hsum(acc): return [f"v_add_f32 v{acc+i}, v{acc+i}, v{acc+i+2}" for i in (0, 1, 4, 5)] + [f"v_cvt_pk_bf16_f32 v{acc+i}, v{acc+i}, v{acc+4+i}" for i in (0, 1)]
    def hwr(acc, off): return [f"ds_write2_b32 v{QKW}, v{acc}, v{acc+1} offset0:{off//4} offset1:{(off+QSTR)//4}"]
    for i, x in enumerate(hsum(AQ)): add(V, 25+i, [x])
    add(X, 31, hwr(AQ, 0))
    rq = [f"ds_read_b128 {vr(QF+4*ks,4)}, v{QKR} offset:{ks*64}" for ks in range(4)]
    add(X, PB2, ["s_waitcnt lgkmcnt(0)", "s_barrier"] + rq[:2]); add(X, PB2+1, rq[2:])
    for i in range(8): add(V, (31, 32, 33, 34, 35, 43, 43, 46)[i], [f"v_mov_b32 v{AQ+7-i}, 0"])
    for i, x in enumerate(hsum(AK)): add(V, 36+i, [x])
    add(X, 42, hwr(AK, KOFF))
    rk = [f"ds_read_b128 {vr(KF[ks],4)}, v{T1} offset:{KOFF+ks*64}" for ks in range(4)]
    add(X, PB3, ["s_waitcnt lgkmcnt(0)", "s_barrier"] + rk[:2]); add(X, PB3+1, rk[2:])
    add(V, 42, [f"v_xor_b32 v{T1}, {QX4}, v{QKR}", f"v_cndmask_b32 v{T1}, v{QKR}, v{T1}, s[12:13]"])
    for i in range(4): add(V, (44, 44, 46, 50)[i], [f"v_mov_b32 v{ONE+i}, 0x3f803f80"])
    for i in range(4): add(V, 51+i, [f"v_cndmask_b32 v{SX+i}, v{SX+i}, v{SX+4+i}, s[12:13]"])
    cv = [f"v_cvt_pk_bf16_f32 v{AV+i}, v{AV+2*i}, v{AV+2*i+1}" for i in range(4)]
    add(V, 55, [f"v_max3_f32 v{MX}, v{SX}, v{SX+1}, v{SX+2}"]); add(V, 56, [f"v_max_f32 v{MX}, v{MX}, v{SX+3}", cv[0]])
    add(V, 57, [f"v_max_f32_dpp v{MX}, v{MX}, v{MX} quad_perm:[2,3,0,1] row_mask:0xf bank_mask:0xf", f"v_max_f32_dpp v{T1}, v{MX}, v{MX} quad_perm:[2,3,0,1] row_mask:0xf bank_mask:0xf"][::-1])
    add(V, 58, [cv[1], f"v_permlane32_swap_b32 v{MX}, v{T1}"])
    add(V, 59, cv[2:] + [f"v_max_f32 v{MX}, v{MX}, v{T1}"] + [f"v_mov_b32 v{HALF+i}, 0x3f003f00" for i in (0, 1)] + [f"s_cmp_eq_u32 s64, {nsteps-1}", f"s_cbranch_scc1 L{tag}_end", "s_nop 0"])
    e.gaps(main, X, V, {23: lambda: T(1), 35: lambda: T(2), 49: lambda: T(3)})
    PM = SM + 2
    fm = lambda r: f"v_fma_f32 v{r}, v{r}, s78, -v{T1}"
    ex = lambda r: f"v_exp_f32 v{r}, v{r}"
    dp = lambda d, s, q: f"v_mov_b32_dpp v{d}, v{s} quad_perm:[{q},{q+1},{q},{q+1}] row_mask:0xf bank_mask:0xf"
    e(f"""v_max3_f32 v{MX}, v{MX}, v{SM}, v{SM+1}
    v_max3_f32 v{T1}, v{MX}, v{SM+2}, v{SM+3}
    v_max3_f32 v{MX}, v{MX}, v{SM+2}, v{SM+3}
    s_nop 1
    v_permlane16_swap_b32 v{MX}, v{T1}
    v_max_f32 v{MX}, v{MX}, v{T1}
    v_mul_f32 v{T1}, s78, v{MX}""")
    for x in [fm(SM), fm(SM+1), ex(SM), ex(SM+1), fm(SX), fm(SX+1), f"v_cvt_pk_bf16_f32 v{PM}, v{SM}, v{SM+1}", f"v_cvt_pk_bf16_f32 v{PM+1}, v{SM}, v{SM+1}",
              fm(SX+2), fm(SX+3), mf16(LA, HALF, PM, "0"), ex(SX), mf16(OA, AV, PM, "0"), ex(SX+1), mf16(OA+4, AV+2, PM, "0"), ex(SX+2), ex(SX+3),
              f"v_cvt_pk_bf16_f32 v{SX+4}, v{SX}, v{SX+1}", f"v_cvt_pk_bf16_f32 v{SX+5}, v{SX+2}, v{SX+3}", "s_nop 0",
              dp(SX, SX+4, 0), dp(SX+2, SX+4, 2), dp(SX+1, SX+5, 0), dp(SX+3, SX+5, 2), "s_nop 1"]: e(x)
    T(4)
    XO = QF + 12
    e(mf(LA, ONE, SX, vr(LA, 4))); e(f"v_xor_b32 v{XO+1}, 32, v{OX}\nv_xor_b32 v{XO+2}, 4096, v{OX}")
    e(mf(OA, VX, SX, vr(OA, 4))); e(f"v_xor_b32 v{XO+3}, 4128, v{OX}"); e(mf(OA+4, VX+4, SX, vr(OA+4, 4)))
    e(f"v_rcp_f32 v{LA}, v{LA}\ns_nop 2")
    for i in range(8): e(f"v_mul_f32 v{OA+i}, v{OA+i}, v{LA}")
    for i in range(4): e(f"v_cvt_pk_bf16_f32 v{OA+i}, v{OA+i}, v{OA+4+i}")
    e(f"s_mov_b64 exec, s[14:15]\nds_write_b128 v{OX}, {vr(OA,4)}\ns_mov_b64 exec, -1")
    e(f"s_waitcnt {'' if LW else f'vmcnt({3 if merged else 2}) '}lgkmcnt(1)\ns_barrier\nL{tag}_wo:")
    T(5)
    OF = [OA, QF, QF+4, QF+8]
    order = [0, 1, 2, 3, 4, 5, 8, 9, 12, 13, 6, 7, 10, 14, 11, 15]
    main = [f"v_smfmac_f32_16x16x64_bf16 {vr(DD[op&3],4)}, {vr(OF[op>>2],4)}, {wreg((3, op>>1, op&1))}, v{IDX}" for op in order]
    X = {PB4: [f"ds_read_b128 {vr(OF[j],4)}, v{XO+j}" for j in (1, 2, 3)],
         13: ["s_add_u32 s37, s72, 0x8000", f"s_cbranch_vccnz L{tag}_redo", f"L{tag}_cont:"], 14: [f"buffer_store_dwordx4 {vr(PK,4)}, v{INS}, s[4:7], s72 offen{sc}"]}
    def pk(u, dst): return [f"v_cvt_pk_bf16_f32 v{dst+2*aa+i}, v{DD[2*u+aa]+2*i}, v{DD[2*u+aa]+2*i+1}" for aa in (0, 1) for i in (0, 1)]
    tagop = lambda r: f"v_and_or_b32 v{r}, v{r}, -2, s39"
    p0 = pk(0, PK); p1 = pk(1, PK+4)
    V = {10: p0[:1], 11: [tagop(PK), p0[1]], 12: p0[2:3], 13: p0[3:], 15: [p1[0], tagop(PK+4), p1[1], "s_nop 2", p1[2], p1[3]]}
    il = [f"v_and_b32 v17, 0x330, v{L16}", f"v_and_b32 v18, 0x30, v{L16}", "v_lshl_add_u32 v17, v18, 1, v17", "v_add_u32 v17, v18, v17", f"v_bfe_u32 v18, v{L16}, 6, 2",
          f"v_lshl_add_u32 v{INL}, v18, 4, v17"]
    ck = [f"v_max3_u32 v17, v{QF}, v{QF+1}, v{QF+2}"] + [f"v_max3_u32 v17, v17, v{QF+3+2*i}, v{QF+4+2*i}" for i in range(4)] + [f"v_max_u32 v17, v17, v{QF+11}", "v_cmp_eq_u32 vcc, -1, v17"]
    for i, x in enumerate(ck): V.setdefault((4, 6, 7, 8, 9, 9, 10)[i], []).append(x)
    X[12] = ["s_add_u32 s58, s72, s74", f"s_mov_b32 s75, {SPIN}"]
    if merged and not LW: V[5] = [f"v_readfirstlane_b32 s56, v{MST}"]
    e.gaps(main, X, V)
    a(f"buffer_store_dwordx4 {vr(PK+4,4)}, v{INS}, s[4:7], s37 offen{sc}")
    T(6)
    D0, D1, t0, t1, t2, t3 = AK, AK+4, AQ, AQ+1, AQ+2, AQ+3
    pr = ["s_mov_b64 s[60:61], -1", "s_mov_b64 s[62:63], -1", "v_mov_b32 v4, 0x3f80", "v_mov_b32 v5, 0x3f800000", "v_cndmask_b32 v4, v4, v5, s[54:55]"]
    pr += [f"v_cndmask_b32 v{i}, 0, v4, s[{46+2*i}:{47+2*i}]" for i in range(4)]
    if LW: pr += [f"s_waitcnt vmcnt({5 if merged else 4})", "s_barrier"] + ([f"v_readfirstlane_b32 s56, v{MST}"] if merged else [])
    pr += f"""v_mov_b32 v{t3}, -1
    v_bfe_u32 v{t0}, v{L16}, 8, 1
    v_and_b32 v{MST}, 0x20, v{L16}
    v_lshl_add_u32 v{MST}, v{t0}, 4, v{MST}
    v_bfe_u32 v{t0}, v{L16}, 4, 1
    v_lshl_add_u32 v{MST}, v{t0}, 3, v{MST}
    v_bfe_u32 v{t0}, v{L16}, 9, 1
    v_lshl_add_u32 v{MST}, v{t0}, 2, v{MST}
    s_mov_b32 s101, s64
    s_add_u32 s64, s64, 1
    s_and_b32 s37, s64, 3
    s_lshl_b32 s37, s37, 13
    s_add_u32 s70, s37, {hex(WS_MEMF)}
    s_add_u32 s69, s70, s76
    s_add_u32 s70, s70, s100
    s_xor_b32 s71, s70, 0x4000""".split("\n")
    if merged: pr += merged["upd"].split("\n")
    pa = preA(); pr = [x.strip().replace("v17", f"v{t0}").replace("v18", f"v{t1}") for x in pr]
    dsr = [x for x in pa if x.startswith("ds_")]; oth = pr + [x for x in pa[3:-2] if not x.startswith("ds_")]
    pr = pa[:3]
    while dsr or oth:
        pr += dsr[:CH[0]] + oth[:CH[1]]; dsr = dsr[CH[0]:]; oth = oth[CH[1]:]
    pr += pa[-2:]
    assert not LW
    for x in pr[:PD1]: a(x)
    a(f"""buffer_load_dwordx4 {vr(D0,4)}, v{L16}, s[4:7], s58 offen sc1
    buffer_load_dwordx4 {vr(D1,4)}, v{L16}, s[4:7], s58 offen offset:1024 sc1""")
    for x in pr[PD1:]: a(x)
    for i in range(PD4): a("s_nop 15")
    if PV1 == 4:
        a(f"buffer_load_dwordx4 {vr(D0,4)}, v{L16}, s[4:7], s58 offen sc1\nbuffer_load_dwordx4 {vr(D1,4)}, v{L16}, s[4:7], s58 offen offset:1024 sc1\ns_nop 15\ns_nop 7")
    if not PV1: a(f"s_branch L{tag}_p1w")
    AL2 = int(os.environ.get('AL2', 6))
    if AL2 >= 0:
        a(".p2align 5")
        for i in range(AL2): a("s_nop 0")
    a.label(f"L{tag}_p1")
    a(f"""s_mov_b64 exec, s[60:61]
    buffer_load_dwordx4 {vr(D0,4)}, v{L16}, s[4:7], s58 offen sc1
    s_mov_b64 exec, s[62:63]
    buffer_load_dwordx4 {vr(D1,4)}, v{L16}, s[4:7], s58 offen offset:1024 sc1
    s_mov_b64 exec, -1
    L{tag}_p1w:
    s_sub_u32 s75, s75, 1
    s_cselect_b64 s[56:57], 0, -1
    s_waitcnt vmcnt({PV1})
    v_and_b32 v{t0}, 1, v{D0}
    v_and_b32 v{t1}, 1, v{D1}
    v_mfma_f32_16x16x32_bf16 v[4:7], v[0:3], {vr(D0,4)}, 0
    v_cmp_ne_u32 s[60:61], s39, v{t0}
    v_cmp_ne_u32 s[62:63], s39, v{t1}
    v_mfma_f32_16x16x32_bf16 v[4:7], v[0:3], {vr(D1,4)}, v[4:7]
    s_or_b64 vcc, s[60:61], s[62:63]
    s_and_b64 vcc, vcc, s[56:57]
    s_cbranch_vccnz L{tag}_p1
    s_nop 4
    v_add_f32_dpp v4, v4, v4 row_ror:4 row_mask:0xf bank_mask:0xf
    v_add_f32_dpp v5, v5, v5 row_ror:4 row_mask:0xf bank_mask:0xf
    s_nop 0
    v_add_f32_dpp v4, v4, v4 row_ror:8 row_mask:0xf bank_mask:0xf
    v_add_f32_dpp v5, v5, v5 row_ror:8 row_mask:0xf bank_mask:0xf
    s_mov_b64 exec, s[44:45]
    v_cvt_pk_bf16_f32 v{t2}, v4, v5
    buffer_store_dword v{t2}, v{MST}, s[4:7], s70 offen{sc}
    buffer_store_dword v{t3}, v{MST}, s[4:7], s71 offen{sc}
    s_mov_b64 exec, -1
    s_xor_b32 s72, s72, 0x40000
    s_lshr_b32 s39, s64, 1
    s_and_b32 s39, s39, 1
    s_mov_b32 s75, {SPIN}""")
    T(7)
    if PV1: a("s_waitcnt vmcnt(2)")
    if ts:
        a("s_waitcnt lgkmcnt(0)\ns_mov_b64 exec, 1")
        for i in range(8): a(f"v_mov_b32 v{AK+i}, s{TSR(i)}")
        a(f"s_lshl_b32 s37, s28, 2\ns_add_u32 s37, s37, s29\ns_lshl_b32 s37, s37, 6\ns_add_u32 s37, s37, s64\ns_lshl_b32 s37, s37, 5\ns_add_u32 s37, s37, {hex(WS_TS)}")
        a(f"buffer_store_dwordx4 {vr(AK,4)}, off, s[4:7], s37\nbuffer_store_dwordx4 {vr(AK+4,4)}, off, s[4:7], s37 offset:16\ns_mov_b64 exec, -1\ns_nop 1")
    a("s_mov_b64 s[58:59], -1\ns_mov_b64 s[62:63], -1")
    for x in preB(): a(x)
    for i in range(PD2 - 1): a("s_nop 15")
    if PV2: a(f"""buffer_load_dwordx4 v[0:3], v{L16}, s[4:7], s69 offen sc1
    buffer_load_dwordx4 v[4:7], v{L16}, s[4:7], s69 offen offset:1024 sc1""")
    for i in range(PD3): a("s_nop 15")
    if PV2 == 4:
        a(f"buffer_load_dwordx4 v[0:3], v{L16}, s[4:7], s69 offen sc1\nbuffer_load_dwordx4 v[4:7], v{L16}, s[4:7], s69 offen offset:1024 sc1")
        for i in range(PD3): a("s_nop 15")
    a(f"s_branch L{tag}_p2")
    a.label(f"L{tag}_redo")
    a(f"s_sub_u32 s94, s94, 1\ns_cbranch_scc1 L{tag}_cont\ns_nop 15")
    for d in DD:
        for i in range(4): a(f"v_mov_b32 v{d+i}, 0")
    if ts: a("s_mov_b64 exec, 1\nv_mov_b32 v17, 1\nbuffer_atomic_add v17, off, s[8:11], 0 offset:44\ns_mov_b64 exec, -1")
    a(f"s_nop 1\ns_branch L{tag}_wo")
    a.label(f"L{tag}_end")
    for x in kmrd(): a(x)
    a(f"buffer_store_dwordx4 {vr(AV,4)}, v{L16}, s[4:7], s68 offen sc1\ns_waitcnt lgkmcnt(0)")
    a(f"buffer_store_dwordx4 {vr(SX,4)}, v{L16}, s[4:7], s67 offen sc1")
    a("s_waitcnt vmcnt(0)")
    if CYC: a(f"s_memtime s[86:87]\ns_waitcnt lgkmcnt(0)\ns_sub_u32 s86, s86, s84\nv_mov_b32 v8, s86\ns_lshl_b32 s37, s28, 2\ns_mov_b64 exec, 1\nbuffer_store_dword v8, off, s[8:11], s37 offset:128\ns_mov_b64 exec, -1")
    if merged: merged["final"](a, tag)
    else: a(f"s_memrealtime s[86:87]\ns_waitcnt lgkmcnt(0)\ns_sub_u32 s86, s86, s84\nv_mov_b32 v8, s86\ns_lshl_b32 s37, s28, 2\ns_mov_b64 exec, 1\nbuffer_store_dword v8, off, s[8:11], s37 offset:128\ns_endpgm")
```
